```python
import torch

def _softmax(x, axis=-1):
    return torch.softmax(x, dim=axis)
def _gelu(x):
    return torch.nn.functional.gelu(x, approximate="tanh")
def _silu(x):
    return torch.nn.functional.silu(x)
def _sigmoid(x):
    return torch.sigmoid(x)
def _layernorm(x, axis=-1, eps=1e-5):
    m = x.mean(dim=axis, keepdim=True)
    v = x.var(dim=axis, keepdim=True, unbiased=False)
    return (x - m) / torch.sqrt(v + eps)
def _scatter_add(tgt, idx, src, axis=0):
    return tgt.clone().index_add_(axis, idx, src)
def _segment_sum(src, seg, n):
    out = torch.zeros((n,) + src.shape[1:], dtype=src.dtype)
    return out.index_add_(0, seg, src)
def _pad(x, pw):
    flat = tuple(v for pair in reversed(pw) for v in pair)
    return torch.nn.functional.pad(x, flat)

kernel_name = 'standalone__low_rank_proj_linformer__prompt'

def setup_inputs():

    _w = (lambda a: (lambda t: t.to(torch.bfloat16) if t.is_floating_point() else t)(torch.as_tensor(a)))
    B, H, Sq, Skv, Dh, R = 1, 32, 2048, 2048, 192, 8
    return {
        "q": _w((lambda *s: torch.randn(*s, dtype=torch.bfloat16) * 0.8)(B, H, Sq, Dh)),
        "k": _w((lambda *s: torch.randn(*s, dtype=torch.bfloat16) * 0.8)(B, H, Skv, Dh)),
        "v": _w((lambda *s: torch.randn(*s, dtype=torch.bfloat16) * 0.05)(B, H, Skv, Dh)),
        "e_proj": _w((lambda *s: torch.randn(*s, dtype=torch.bfloat16) * 0.8)(R, Skv) * (Skv ** -0.5)),
        "f_proj": _w((lambda *s: torch.randn(*s, dtype=torch.bfloat16) * 0.05)(R, Skv) * (Skv ** -0.5)),
    }

def reference(q, k, v, e_proj, f_proj):
    B, H, Sq, Dh = q.shape
    kp = torch.einsum("rn,bhnd->bhrd", e_proj, k)
    vp = torch.einsum("rn,bhnd->bhrd", f_proj, v)
    scores = torch.einsum("bhqd,bhrd->bhqr", q, kp) * (Dh ** -0.5)
    p = _softmax(scores, axis=-1)
    o = torch.einsum("bhqr,bhrd->bhqd", p, vp)
    return o
```

```python
import struct, sys, argparse

NAME = "standalone__low_rank_proj_linformer__prompt"

def f2u(x): return struct.unpack("<I", struct.pack("<f", x))[0]

class Asm:
    def __init__(self): self.l = []
    def __call__(self, s):
        for line in s.strip("\n").split("\n"):
            self.l.append("    " + line.strip() if not line.strip().endswith(":") else line.strip())
    def label(self, s): self.l.append(s + ":")
    def c(self, s): self.l.append("    ; " + s)
    def text(self): return "\n".join(self.l) + "\n"

def v(a, n=1): return f"v{a}" if n == 1 else f"v[{a}:{a+n-1}]"
def s(a, n=1): return f"s{a}" if n == 1 else f"s[{a}:{a+n-1}]"

QB   = 0
PB   = 98304
KPB  = PB + 49152
KP_PITCH = 400
VPB  = KPB + 8 * KP_PITCH
ZB   = VPB + 24 * 144
LDS_BYTES = ZB + 512

def gen(opt):
    a = Asm()
    stamps = opt.stamps
    nst = [0]
    def stamp(k):
        if not stamps: return
        a(f"s_memrealtime s[{70+2*k}:{71+2*k}]")
        a("s_waitcnt lgkmcnt(0)")
    a("s_cmp_ge_u32 s2, 256")
    a("s_cbranch_scc1 L_end")
    a("s_load_dwordx16 s[4:19], s[0:1], 0")
    stamp(0)
    a(f"""
    s_and_b32 s40, s2, 7
    s_lshr_b32 s41, s2, 3
    s_and_b32 s41, s41, 3
    s_lshl_b32 s40, s40, 2
    s_add_u32 s40, s40, s41            ; s40 = head
    s_lshr_b32 s41, s2, 5              ; s41 = slot s (0..7)
    s_lshr_b32 s42, s41, 2             ; s42 = m (0: K/e, 1: V/f)
    s_and_b32 s43, s41, 3
    v_lshrrev_b32 v2, 6, v0
    v_and_b32 v1, 63, v0               ; lane
    v_readfirstlane_b32 s44, v2
    s_lshl_b32 s45, s40, 3
    s_add_u32 s45, s45, s41            ; s45 = h*8+s
    s_lshl_b32 s51, s40, 2
    s_add_u32 s51, s51, s43            ; h*4+j
    s_mul_i32 s51, s51, 196608
    s_mul_i32 s52, s45, 98304
    s_mul_i32 s53, s44, 24576
    s_add_u32 s46, s53, 0
    s_add_u32 s47, s53, 6144
    s_add_u32 s48, s53, 12288
    s_add_u32 s49, s53, 18432
    s_lshl_b32 s50, s43, 10
    s_lshl_b32 s54, s44, 7
    s_add_u32 s50, s50, s54            ; e soffset = j*1024 + w*128
    s_mul_i32 s55, s44, 12288
    """)
    a(f"""
    v_lshrrev_b32 v4, 5, v1            ; hh
    v_and_b32 v5, 31, v1               ; c32
    v_mul_u32_u24 v4, 3072, v4
    v_mul_u32_u24 v5, 12, v5
    v_add_u32 v2, v4, v5
    v_lshrrev_b32 v6, 4, v1            ; v6 = g
    v_and_b32 v7, 15, v1               ; v7 = c / rho
    v_and_b32 v4, 7, v1
    v_lshlrev_b32 v4, 12, v4           ; (rho&7)*4096
    v_lshrrev_b32 v5, 5, v1            ; g>>1
    v_lshl_add_u32 v3, v5, 4, v4       ; + (g>>1)*16
    v_lshrrev_b32 v4, 3, v1
    v_xor_b32 v4, v4, v6
    v_and_b32 v4, 1, v4
    v_lshlrev_b32 v4, 30, v4
    v_or_b32 v3, v3, v4
    """)
    a("s_waitcnt lgkmcnt(0)")
    a(f"""
    s_cmp_eq_u32 s42, 0
    s_cselect_b32 s20, s6, s8
    s_cselect_b32 s21, s7, s9
    s_cselect_b32 s24, s10, s12
    s_cselect_b32 s25, s11, s13
    s_add_u32 s20, s20, s51
    s_addc_u32 s21, s21, 0
    s_mov_b32 s22, 196608
    s_mov_b32 s23, 0x20000
    s_mov_b32 s26, 32768
    s_mov_b32 s27, 0x20000
    s_add_u32 s28, s4, s52
    s_addc_u32 s29, s5, 0
    s_mov_b32 s30, 98304
    s_mov_b32 s31, 0x20000
    s_add_u32 s32, s14, s52
    s_addc_u32 s33, s15, 0
    s_mov_b32 s34, 98304
    s_mov_b32 s35, 0x20000
    s_mov_b32 s36, s18
    s_mov_b32 s37, s19
    s_mov_b32 s38, {256*6144}
    s_mov_b32 s39, 0x20000
    """)
    EB = 8
    ACC = 24
    FB = 48
    QV = 72
    LB = 128
    for b in range(4):
        a(f"buffer_load_dwordx4 {v(EB+4*b,4)}, v3, s[24:27], s50 offen offset:{32*b}")
    kvflag = opt.kvflag
    for b in range(4):
        for jj in range(8):
            a(f"buffer_load_dwordx3 {v(LB+32*b+4*jj,3)}, v2, s[20:23], s{46+b} offen offset:{384*jj} {kvflag}")
    a("v_lshlrev_b32 v4, 8, v6            ; gamma*256")
    for i in range(12):
        a(f"""
        v_add_u32 v5, {4*i}, v6
        v_mul_u32_u24 v5, 0x5556, v5
        v_lshrrev_b32 v5, 16, v5
        v_xor_b32 v5, v5, v7
        v_lshl_add_u32 v{QV+i}, v5, 4, v4
        """)
    def qdma(i0, i1):
        for i in range(i0, i1):
            if i % 4 == 0 or i == i0:
                grp = (i // 4) * 4096
                a(f"s_add_u32 s56, s55, {grp}")
                a(f"s_add_u32 m0, s56, {QB}" if QB else "s_mov_b32 m0, s56")
                a("s_nop 0")
            a(f"buffer_load_dwordx4 v{QV+i}, s[28:31], s56 offen offset:{(i%4)*1024} {opt.qflag} lds")
    nq0 = opt.q0
    qdma(0, nq0)
    a(f"""
    v_mov_b32 v4, 0
    v_mov_b32 v5, 0
    v_lshlrev_b32 v84, 3, v1
    v_add_u32 v84, {ZB}, v84
    s_cmp_lg_u32 s44, 7
    s_cbranch_scc1 L_nozero
    ds_write_b64 v84, v[4:5]
    """)
    a.label("L_nozero")
    a(f"s_mov_b32 s57, 0x05040100")
    a(f"s_mov_b32 s58, 0x07060302")
    stamp(1)
    for b in range(4):
        a(f"s_waitcnt vmcnt({nq0 + 24 - 8*b})")
        if b == 0: stamp(2)
        for t in range(6):
            u, p = t // 2, t % 2
            sel = "s58" if p else "s57"
            for m in range(4):
                lo = LB + 32*b + 4*(2*m) + u
                hi = LB + 32*b + 4*(2*m+1) + u
                a(f"v_perm_b32 v{FB+4*t+m}, v{hi}, v{lo}, {sel}")
        a("s_nop 1")
        for t in range(6):
            cin = "0" if b == 0 else v(ACC+4*t,4)
            a(f"v_mfma_f32_16x16x32_bf16 {v(ACC+4*t,4)}, {v(EB+4*b,4)}, {v(FB+4*t,4)}, {cin}")
    stamp(3)
    a(f"""
    v_lshlrev_b32 v85, 4, v1           ; lane*16
    s_mul_i32 s59, s44, 6144
    s_add_u32 s59, s59, {PB}
    v_add_u32 v86, s59, v85
    s_nop 4
    """)
    for t in range(6):
        a(f"ds_write_b128 v86, {v(ACC+4*t,4)} offset:{1024*t}")
    a("s_waitcnt lgkmcnt(0)")
    a("s_barrier")
    a("s_cmp_ge_u32 s44, 6")
    a("s_cbranch_scc1 L_red_done")
    a(f"""
    s_lshl_b32 s59, s44, 10
    s_add_u32 s60, s59, {PB}
    v_add_u32 v86, s60, v85
    """)
    RB = 88
    for w2 in range(8):
        a(f"ds_read_b128 {v(RB+4*w2,4)}, v86 offset:{6144*w2}")
    a(f"""
    s_mul_i32 s60, s45, 6144
    s_add_u32 s60, s60, s59            ; slot*6144 + w*1024
    """)
    a("s_waitcnt lgkmcnt(0)")
    for st in (1, 2, 4):
        for w2 in range(0, 8, 2*st):
            for i in range(4):
                a(f"v_add_f32 v{RB+4*w2+i}, v{RB+4*w2+i}, v{RB+4*(w2+st)+i}")
    a(f"buffer_store_dwordx4 {v(RB,4)}, v85, s[36:39], s60 offen sc1")
    a.label("L_red_done")
    stamp(4)
    qdma(nq0, opt.q1)
    if not opt.nosync:
        a("s_waitcnt vmcnt(0)")
        a("s_barrier")
        stamp(5)
        a("s_cmp_lg_u32 s44, 0")
        a("s_cbranch_scc1 L_poll_done")
        a(f"""
        v_mov_b32 v4, s45
        v_mov_b32 v5, 1
        s_lshl_b32 s61, s40, 3
        v_mov_b32 v87, s61
        s_mov_b64 exec, 1
        global_store_byte v4, v5, s[16:17] sc0 sc1
        s_mov_b32 s62, 0
        """)
        a.label("L_poll")
        a(f"""
        global_load_dwordx2 v[4:5], v87, s[16:17] sc0 sc1
        s_waitcnt vmcnt(0)
        v_and_b32 v4, v4, v5
        s_nop 0
        v_readfirstlane_b32 s63, v4
        s_add_u32 s62, s62, 1
        s_cmp_eq_u32 s63, 0x01010101
        s_cbranch_scc1 L_poll_ok
        s_sleep 2
        s_cmp_lt_u32 s62, 200000
        s_cbranch_scc1 L_poll
        """)
        a.label("L_poll_ok")
        a("s_mov_b64 exec, -1")
        a.label("L_poll_done")
        a("s_barrier")
    stamp(6)
    a("s_cmp_ge_u32 s44, 6")
    a("s_cbranch_scc1 L_pay_skip")
    a(f"""
    s_mul_i32 s60, s40, {8*6144}
    s_lshl_b32 s59, s44, 10
    s_add_u32 s60, s60, s59
    """)
    for k in range(8):
        a(f"buffer_load_dwordx4 {v(RB+4*k,4)}, v85, s[36:39], s60 offen sc1")
        if k < 7: a("s_add_u32 s60, s60, 6144")
    a.label("L_pay_skip")
    qdma(opt.q1, 12)
    nq2 = 12 - opt.q1
    a("s_cmp_ge_u32 s44, 6")
    a("s_cbranch_scc1 L_pay_done")
    a(f"""
    v_lshrrev_b32 v4, 1, v6            ; g>>1
    v_mul_u32_u24 v4, 96, v4
    v_mul_u32_u24 v5, 6, v7
    v_add_u32 v4, v4, v5
    v_add_u32 v4, s44, v4              ; d
    v_and_b32 v5, 1, v6                ; g&1
    v_mul_u32_u24 v86, {4*KP_PITCH}, v5
    v_lshl_add_u32 v86, v4, 1, v86
    v_add_u32 v86, {KPB}, v86
    v_lshrrev_b32 v87, 3, v4
    v_add_u32 v87, v87, v4
    v_lshlrev_b32 v87, 4, v87
    v_lshl_add_u32 v87, v5, 3, v87
    v_add_u32 v87, {VPB}, v87
    """)
    a(f"s_waitcnt vmcnt({nq2})")
    for m in range(2):
        o = RB + 16*m
        for i in range(4):
            a(f"v_add_f32 v{o+i}, v{o+i}, v{o+4+i}")
            a(f"v_add_f32 v{o+8+i}, v{o+8+i}, v{o+12+i}")
        for i in range(4):
            a(f"v_add_f32 v{o+i}, v{o+i}, v{o+8+i}")
        a(f"v_cvt_pk_bf16_f32 v{o}, v{o}, v{o+1}")
        a(f"v_cvt_pk_bf16_f32 v{o+1}, v{o+2}, v{o+3}")
    a(f"""
    ds_write_b16 v86, v{RB} offset:0
    ds_write_b16_d16_hi v86, v{RB} offset:{KP_PITCH}
    ds_write_b16 v86, v{RB+1} offset:{2*KP_PITCH}
    ds_write_b16_d16_hi v86, v{RB+1} offset:{3*KP_PITCH}
    ds_write_b64 v87, {v(RB+16,2)}
    s_waitcnt lgkmcnt(0)
    """)
    a.label("L_pay_done")
    a("s_barrier")
    stamp(7)
    A1 = 8
    B02 = 32
    B1 = 48
    QF = 128
    DD = 176
    a(f"""
    v_and_b32 v4, 7, v7
    v_mul_u32_u24 v4, {KP_PITCH}, v4
    v_lshl_add_u32 v4, v6, 4, v4
    v_add_u32 v64, {KPB}, v4           ; A1 addr
    v_lshrrev_b32 v4, 1, v6            ; g>>1
    v_and_b32 v5, 1, v6                ; g&1
    v_mul_u32_u24 v65, 144, v7         ; 144c
    v_mul_u32_u24 v66, 1152, v4
    v_add_u32 v66, v66, v65
    v_lshl_add_u32 v66, v5, 3, v66
    v_add_u32 v66, {VPB}, v66          ; B02 addr
    v_lshrrev_b32 v67, 3, v7           ; c>>3
    v_cmp_eq_u32 vcc, v67, v4
    v_mul_u32_u24 v67, {144*24}, v4
    v_sub_u32 v67, v65, v67            ; g>>1 ? 144c-144*24 : 144c
    v_add_u32 v67, {144*16 + VPB}, v67 ; g<2: 144(16+c) ; g>=2: 144(c-8)
    v_mov_b32 v68, {ZB}
    v_cndmask_b32 v67, v68, v67, vcc
    v_lshl_add_u32 v67, v5, 3, v67     ; B1 addr
    """)
    for s6 in range(6):
        a(f"ds_read_b128 {v(A1+4*s6,4)}, v64 offset:{64*s6}")
    for t8 in range(8):
        a(f"ds_read_b64 {v(B02+2*t8,2)}, v66 offset:{16*t8}")
    for t8 in range(8):
        a(f"ds_read_b64 {v(B1+2*t8,2)}, v67 offset:{16*t8}")
    a(f"""
    v_mul_u32_u24 v4, 768, v7
    v_add_u32 v4, s55, v4
    """)
    for aa in range(4):
        a(f"""
        v_add_u32 v5, {4*aa}, v6
        v_xor_b32 v5, v5, v7
        v_lshl_add_u32 v{68+aa}, v5, 4, v4
        """)
    a("s_waitcnt vmcnt(0)")
    stamp(8)
    for u in range(12):
        a(f"ds_read_b128 {v(QF+4*u,4)}, v{68+(u&3)} offset:{QB + (u>>2)*256}")
    a(f"""
    s_mov_b32 s60, {f2u(192**-0.5):#x}
    s_mov_b32 s61, {f2u(1.4426950408889634):#x}
    v_cmp_gt_u32 vcc, 32, v1           ; lanes g<2
    v_lshlrev_b32 v72, 4, v7
    v_mul_u32_u24 v73, 3072, v6
    v_add_u32 v72, v72, v73            ; O voffset
    """)
    a("s_waitcnt lgkmcnt(0)")
    for s6 in range(6):
        cin0 = "0" if s6 == 0 else v(DD,4)
        cin1 = "0" if s6 == 0 else v(DD+4,4)
        a(f"v_mfma_f32_16x16x32_bf16 {v(DD,4)}, {v(A1+4*s6,4)}, {v(QF+4*s6,4)}, {cin0}")
        a(f"v_mfma_f32_16x16x32_bf16 {v(DD+4,4)}, {v(A1+4*s6,4)}, {v(QF+4*(6+s6),4)}, {cin1}")
    a("s_nop 7")
    S0 = 76
    for i in range(4):
        a(f"v_cndmask_b32 v{S0+i}, v{DD+4+i}, v{DD+i}, vcc")
    a(f"""
    v_cvt_pk_bf16_f32 v80, v{S0}, v{S0+1}
    v_cvt_pk_bf16_f32 v81, v{S0+2}, v{S0+3}
    v_lshlrev_b32 v{S0}, 16, v80
    v_and_b32 v{S0+1}, 0xffff0000, v80
    v_lshlrev_b32 v{S0+2}, 16, v81
    v_and_b32 v{S0+3}, 0xffff0000, v81
    v_mul_f32 v{S0}, s60, v{S0}
    v_mul_f32 v{S0+1}, s60, v{S0+1}
    v_mul_f32 v{S0+2}, s60, v{S0+2}
    v_mul_f32 v{S0+3}, s60, v{S0+3}
    v_cvt_pk_bf16_f32 v80, v{S0}, v{S0+1}
    v_cvt_pk_bf16_f32 v81, v{S0+2}, v{S0+3}
    v_lshlrev_b32 v{S0}, 16, v80
    v_and_b32 v{S0+1}, 0xffff0000, v80
    v_lshlrev_b32 v{S0+2}, 16, v81
    v_and_b32 v{S0+3}, 0xffff0000, v81
    v_max_f32 v80, v{S0}, v{S0+1}
    v_max3_f32 v80, v{S0+2}, v{S0+3}, v80
    v_mov_b32 v81, v80
    s_nop 1
    v_permlane16_swap_b32 v80, v81
    s_nop 1
    v_max_f32 v80, v80, v81
    v_sub_f32 v{S0}, v{S0}, v80
    v_sub_f32 v{S0+1}, v{S0+1}, v80
    v_sub_f32 v{S0+2}, v{S0+2}, v80
    v_sub_f32 v{S0+3}, v{S0+3}, v80
    v_mul_f32 v{S0}, s61, v{S0}
    v_mul_f32 v{S0+1}, s61, v{S0+1}
    v_mul_f32 v{S0+2}, s61, v{S0+2}
    v_mul_f32 v{S0+3}, s61, v{S0+3}
    v_exp_f32 v{S0}, v{S0}
    v_exp_f32 v{S0+1}, v{S0+1}
    v_exp_f32 v{S0+2}, v{S0+2}
    v_exp_f32 v{S0+3}, v{S0+3}
    s_nop 0
    v_add_f32 v80, v{S0}, v{S0+1}
    v_add_f32 v81, v{S0+2}, v{S0+3}
    v_add_f32 v80, v80, v81
    v_mov_b32 v81, v80
    s_nop 1
    v_permlane16_swap_b32 v80, v81
    s_nop 1
    v_add_f32 v80, v80, v81
    v_rcp_f32 v80, v80
    s_nop 0
    v_mul_f32 v{S0}, v{S0}, v80
    v_mul_f32 v{S0+1}, v{S0+1}, v80
    v_mul_f32 v{S0+2}, v{S0+2}, v80
    v_mul_f32 v{S0+3}, v{S0+3}, v80
    v_cvt_pk_bf16_f32 v82, v{S0}, v{S0+1}
    v_cvt_pk_bf16_f32 v83, v{S0+2}, v{S0+3}
    v_mov_b32 v80, 0
    v_cndmask_b32 v84, v80, v82, vcc   ; A2_E
    v_cndmask_b32 v85, v80, v83, vcc
    v_cndmask_b32 v86, v82, v80, vcc   ; A2_O
    v_cndmask_b32 v87, v83, v80, vcc
    s_nop 1
    """)
    def seg_mfma(seg, base):
        A = {0: "v[84:85]", 1: "v[82:83]", 2: "v[86:87]"}[seg]
        for t8 in range(8):
            B = v((B1 if seg == 1 else B02) + 2*t8, 2)
            a(f"v_mfma_f32_16x16x16_bf16 {v(base+4*t8,4)}, {A}, {B}, 0")
    def seg_store(seg, base, out):
        for i in range(4):
            for q in range(4):
                a(f"v_cvt_pk_bf16_f32 v{out+4*i+q}, v{base+4*(2*q)+i}, v{base+4*(2*q+1)+i}")
        for i in range(4):
            a(f"buffer_store_dwordx4 {v(out+4*i,4)}, v72, s[32:35], s55 offen offset:{768*i+256*seg} {opt.oflag}")
    seg_mfma(0, DD)
    seg_mfma(1, DD+32)
    seg_store(0, DD, 88)
    seg_mfma(2, DD)
    seg_store(1, DD+32, 104)
    a("s_nop 7")
    seg_store(2, DD, 88+32)
    stamp(9)
    if stamps:
        a("s_waitcnt vmcnt(0)")
        stamp(10)
        a(f"s_cmp_lg_u32 s44, {opt.stampwave}")
        a("s_cbranch_scc1 L_end")
        a(f"""
        s_lshl_b32 s60, s2, 7
        s_add_u32 s60, s60, 0x8000000
        s_add_u32 s62, s18, s60
        s_addc_u32 s63, s19, 0
        s_mov_b64 exec, 1
        v_mov_b32 v4, 0
        """)
        for k in range(11):
            a(f"v_mov_b32 v6, s{70+2*k}")
            a(f"v_mov_b32 v7, s{71+2*k}")
            a(f"global_store_dwordx2 v4, v[6:7], s[62:63] offset:{8*k}")
            a("s_nop 1")
    a.label("L_end")
    a("s_endpgm")
    return a.text()

HEADER = open("cdna_kernels/" + NAME + ".s.ref").read().split("; Override launch")[0]

def wrap(body, lds):
    out = HEADER
    out += "; Override launch geometry by editing the next line (default: block=256,\n"
    out += "; grid=ceil(out_elems/256), lds=0). Harness parses it; keep it on one line.\n"
    out += f"; @launch grid=(256,1,1) block=(512,1,1) lds={lds}\n"
    out += f""".amdgcn_target "amdgcn-amd-amdhsa--gfx950"
.text
.globl {NAME}_kernel
.p2align 8
.type {NAME}_kernel,@function
{NAME}_kernel:
"""
    out += body
    out += f""".section .rodata,"a"
.p2align 6
.amdhsa_kernel {NAME}_kernel
  .amdhsa_next_free_vgpr 256
  .amdhsa_next_free_sgpr 102
  .amdhsa_accum_offset 256
  .amdhsa_group_segment_fixed_size 0
  .amdhsa_kernarg_size 64
  .amdhsa_user_sgpr_count 2
  .amdhsa_user_sgpr_kernarg_segment_ptr 1
  .amdhsa_system_sgpr_workgroup_id_x 1
.end_amdhsa_kernel
"""
    return out

if __name__ == "__main__":
    ap = argparse.ArgumentParser()
    ap.add_argument("-o", default="k.s")
    ap.add_argument("--stamps", action="store_true")
    ap.add_argument("--stampwave", type=int, default=0)
    ap.add_argument("--nosync", action="store_true")
    ap.add_argument("--q0", type=int, default=12)
    ap.add_argument("--q1", type=int, default=12)
    ap.add_argument("--kvflag", default="")
    ap.add_argument("--qflag", default="")
    ap.add_argument("--oflag", default="")
    opt = ap.parse_args()
    open(opt.o, "w").write(wrap(gen(opt), LDS_BYTES))
    print("wrote", opt.o, "lds", LDS_BYTES)
```

```python
import struct, sys, argparse

NAME = "standalone__low_rank_proj_linformer__prompt"

def f2u(x): return struct.unpack("<I", struct.pack("<f", x))[0]

class Asm:
    def __init__(self): self.l = []
    def __call__(self, s):
        for line in s.strip("\n").split("\n"):
            self.l.append("    " + line.strip() if not line.strip().endswith(":") else line.strip())
    def label(self, s): self.l.append(s + ":")
    def c(self, s): self.l.append("    ; " + s)
    def text(self): return "\n".join(self.l) + "\n"

def v(a, n=1): return f"v{a}" if n == 1 else f"v[{a}:{a+n-1}]"
def s(a, n=1): return f"s{a}" if n == 1 else f"s[{a}:{a+n-1}]"

QB   = 0
PB   = 98304
KPB  = PB + 49152
KP_PITCH = 400
VPB  = KPB + 8 * KP_PITCH
ZB   = VPB + 24 * 144
LDS_BYTES = ZB + 512

def gen(opt):
    a = Asm()
    stamps = opt.stamps
    nst = [0]
    def stamp(k):
        if not stamps: return
        a(f"s_memrealtime s[{70+2*k}:{71+2*k}]")
        a("s_waitcnt lgkmcnt(0)")
    a("s_cmp_ge_u32 s2, 256")
    a("s_cbranch_scc1 L_end")
    a("s_load_dwordx16 s[4:19], s[0:1], 0")
    stamp(0)
    a(f"""
    s_and_b32 s40, s2, 7
    s_lshr_b32 s41, s2, 3
    s_and_b32 s41, s41, 3
    s_lshl_b32 s40, s40, 2
    s_add_u32 s40, s40, s41            ; s40 = head
    s_lshr_b32 s41, s2, 5              ; s41 = slot s (0..7)
    s_lshr_b32 s42, s41, 2             ; s42 = m (0: K/e, 1: V/f)
    s_and_b32 s43, s41, 3
    v_lshrrev_b32 v2, 6, v0
    v_and_b32 v1, 63, v0               ; lane
    v_readfirstlane_b32 s44, v2
    s_lshl_b32 s45, s40, 3
    s_add_u32 s45, s45, s41            ; s45 = h*8+s
    s_lshl_b32 s51, s40, 2
    s_add_u32 s51, s51, s43            ; h*4+j
    s_mul_i32 s51, s51, 196608
    s_mul_i32 s52, s45, 98304
    s_mul_i32 s53, s44, 24576
    s_add_u32 s46, s53, 0
    s_add_u32 s47, s53, 6144
    s_add_u32 s48, s53, 12288
    s_add_u32 s49, s53, 18432
    s_lshl_b32 s50, s43, 10
    s_lshl_b32 s54, s44, 7
    s_add_u32 s50, s50, s54            ; e soffset = j*1024 + w*128
    s_mul_i32 s55, s44, 12288
    """)
    a(f"""
    v_lshrrev_b32 v4, 5, v1            ; hh
    v_and_b32 v5, 31, v1               ; c32
    v_mul_u32_u24 v4, 3072, v4
    v_mul_u32_u24 v5, 12, v5
    v_add_u32 v2, v4, v5
    v_lshrrev_b32 v6, 4, v1            ; v6 = g
    v_and_b32 v7, 15, v1               ; v7 = c / rho
    v_and_b32 v4, 7, v1
    v_lshlrev_b32 v4, 12, v4           ; (rho&7)*4096
    v_lshrrev_b32 v5, 5, v1            ; g>>1
    v_lshl_add_u32 v3, v5, 4, v4       ; + (g>>1)*16
    v_lshrrev_b32 v4, 3, v1
    v_xor_b32 v4, v4, v6
    v_and_b32 v4, 1, v4
    v_lshlrev_b32 v4, 30, v4
    v_or_b32 v3, v3, v4
    """)
    a("s_waitcnt lgkmcnt(0)")
    a(f"""
    s_cmp_eq_u32 s42, 0
    s_cselect_b32 s20, s6, s8
    s_cselect_b32 s21, s7, s9
    s_cselect_b32 s24, s10, s12
    s_cselect_b32 s25, s11, s13
    s_add_u32 s20, s20, s51
    s_addc_u32 s21, s21, 0
    s_mov_b32 s22, 196608
    s_mov_b32 s23, 0x20000
    s_mov_b32 s26, 32768
    s_mov_b32 s27, 0x20000
    s_add_u32 s28, s4, s52
    s_addc_u32 s29, s5, 0
    s_mov_b32 s30, 98304
    s_mov_b32 s31, 0x20000
    s_add_u32 s32, s14, s52
    s_addc_u32 s33, s15, 0
    s_mov_b32 s34, 98304
    s_mov_b32 s35, 0x20000
    s_mov_b32 s36, s18
    s_mov_b32 s37, s19
    s_mov_b32 s38, {256*6144}
    s_mov_b32 s39, 0x20000
    """)
    EB = 8
    ACC = 24
    FB = 48
    QV = 72
    LB = 128
    for b in range(4):
        a(f"buffer_load_dwordx4 {v(EB+4*b,4)}, v3, s[24:27], s50 offen offset:{32*b}")
    kvflag = opt.kvflag
    for b in range(4):
        for jj in range(8):
            a(f"buffer_load_dwordx3 {v(LB+32*b+4*jj,3)}, v2, s[20:23], s{46+b} offen offset:{384*jj} {kvflag}")
    a("v_lshlrev_b32 v4, 8, v6            ; gamma*256")
    for i in range(12):
        a(f"""
        v_add_u32 v5, {4*i}, v6
        v_mul_u32_u24 v5, 0x5556, v5
        v_lshrrev_b32 v5, 16, v5
        v_xor_b32 v5, v5, v7
        v_lshl_add_u32 v{QV+i}, v5, 4, v4
        """)
    def qdma(i0, i1):
        for i in range(i0, i1):
            if i % 4 == 0 or i == i0:
                grp = (i // 4) * 4096
                a(f"s_add_u32 s56, s55, {grp}")
                a(f"s_add_u32 m0, s56, {QB}" if QB else "s_mov_b32 m0, s56")
                a("s_nop 0")
            a(f"buffer_load_dwordx4 v{QV+i}, s[28:31], s56 offen offset:{(i%4)*1024} {opt.qflag} lds")
    nq0 = opt.q0
    qdma(0, nq0)
    a(f"""
    v_mov_b32 v4, 0
    v_mov_b32 v5, 0
    v_lshlrev_b32 v84, 3, v1
    v_add_u32 v84, {ZB}, v84
    s_cmp_lg_u32 s44, 7
    s_cbranch_scc1 L_nozero
    ds_write_b64 v84, v[4:5]
    """)
    a.label("L_nozero")
    a(f"s_mov_b32 s57, 0x05040100")
    a(f"s_mov_b32 s58, 0x07060302")
    stamp(1)
    for b in range(4):
        a(f"s_waitcnt vmcnt({nq0 + 24 - 8*b})")
        if b == 0: stamp(2)
        for t in range(6):
            u, p = t // 2, t % 2
            sel = "s58" if p else "s57"
            for m in range(4):
                lo = LB + 32*b + 4*(2*m) + u
                hi = LB + 32*b + 4*(2*m+1) + u
                a(f"v_perm_b32 v{FB+4*t+m}, v{hi}, v{lo}, {sel}")
        a("s_nop 1")
        for t in range(6):
            cin = "0" if b == 0 else v(ACC+4*t,4)
            a(f"v_mfma_f32_16x16x32_bf16 {v(ACC+4*t,4)}, {v(EB+4*b,4)}, {v(FB+4*t,4)}, {cin}")
    stamp(3)
    a(f"""
    v_lshlrev_b32 v85, 4, v1           ; lane*16
    s_mul_i32 s59, s44, 6144
    s_add_u32 s59, s59, {PB}
    v_add_u32 v86, s59, v85
    s_nop 4
    """)
    for t in range(6):
        a(f"ds_write_b128 v86, {v(ACC+4*t,4)} offset:{1024*t}")
    a("s_waitcnt lgkmcnt(0)")
    a("s_barrier")
    a("s_cmp_ge_u32 s44, 6")
    a("s_cbranch_scc1 L_red_done")
    a(f"""
    s_lshl_b32 s59, s44, 10
    s_add_u32 s60, s59, {PB}
    v_add_u32 v86, s60, v85
    """)
    RB = 88
    for w2 in range(8):
        a(f"ds_read_b128 {v(RB+4*w2,4)}, v86 offset:{6144*w2}")
    a(f"""
    s_mul_i32 s60, s45, 6144
    s_add_u32 s60, s60, s59            ; slot*6144 + w*1024
    """)
    a("s_waitcnt lgkmcnt(0)")
    for st in (1, 2, 4):
        for w2 in range(0, 8, 2*st):
            for i in range(4):
                a(f"v_add_f32 v{RB+4*w2+i}, v{RB+4*w2+i}, v{RB+4*(w2+st)+i}")
    a(f"buffer_store_dwordx4 {v(RB,4)}, v85, s[36:39], s60 offen sc1")
    a.label("L_red_done")
    stamp(4)
    qdma(nq0, opt.q1)
    if not opt.nosync:
        a("s_waitcnt vmcnt(0)")
        a("s_barrier")
        stamp(5)
        a("s_cmp_lg_u32 s44, 0")
        a("s_cbranch_scc1 L_poll_done")
        if opt.dbgstamps:
            a(f"""
            s_lshl_b32 s61, s40, 2
            s_add_u32 s61, s61, 128
            v_mov_b32 v87, s61
            v_mov_b32 v5, 1
            s_mov_b64 exec, 1
            global_atomic_add v87, v5, s[16:17] sc1
            s_mov_b32 s62, 0
            """)
            a.label("L_poll")
            a(f"""
            global_load_dword v4, v87, s[16:17] sc0 sc1
            s_waitcnt vmcnt(0)
            v_readfirstlane_b32 s63, v4
            s_add_u32 s62, s62, 1
            s_cmp_eq_u32 s63, 8
            """)
        else:
          a(f"""
        v_mov_b32 v4, s45
        v_mov_b32 v5, 1
        s_lshl_b32 s61, s40, 3
        v_mov_b32 v87, s61
        s_mov_b64 exec, 1
        global_store_byte v4, v5, s[16:17] sc0 sc1
        s_mov_b32 s62, 0
        """)
          a.label("L_poll")
          a(f"""
        global_load_dwordx2 v[4:5], v87, s[16:17] sc0 sc1
        s_waitcnt vmcnt(0)
        v_and_b32 v4, v4, v5
        s_nop 0
        v_readfirstlane_b32 s63, v4
        s_add_u32 s62, s62, 1
        s_cmp_eq_u32 s63, 0x01010101
        """)
        a(f"""
        s_cbranch_scc1 L_poll_ok
        s_sleep 2
        s_cmp_lt_u32 s62, 200000
        s_cbranch_scc1 L_poll
        """)
        a.label("L_poll_ok")
        a("s_mov_b64 exec, -1")
        a.label("L_poll_done")
        a("s_barrier")
    stamp(6)
    a("s_cmp_ge_u32 s44, 6")
    a("s_cbranch_scc1 L_pay_skip")
    a(f"""
    s_mul_i32 s60, s40, {8*6144}
    s_lshl_b32 s59, s44, 10
    s_add_u32 s60, s60, s59
    """)
    for k in range(8):
        a(f"buffer_load_dwordx4 {v(RB+4*k,4)}, v85, s[36:39], s60 offen sc1")
        if k < 7: a("s_add_u32 s60, s60, 6144")
    a.label("L_pay_skip")
    qdma(opt.q1, 12)
    nq2 = 12 - opt.q1
    a("s_cmp_ge_u32 s44, 6")
    a("s_cbranch_scc1 L_pay_done")
    a(f"""
    v_lshrrev_b32 v4, 1, v6            ; g>>1
    v_mul_u32_u24 v4, 96, v4
    v_mul_u32_u24 v5, 6, v7
    v_add_u32 v4, v4, v5
    v_add_u32 v4, s44, v4              ; d
    v_and_b32 v5, 1, v6                ; g&1
    v_mul_u32_u24 v86, {4*KP_PITCH}, v5
    v_lshl_add_u32 v86, v4, 1, v86
    v_add_u32 v86, {KPB}, v86
    v_lshrrev_b32 v87, 3, v4
    v_add_u32 v87, v87, v4
    v_lshlrev_b32 v87, 4, v87
    v_lshl_add_u32 v87, v5, 3, v87
    v_add_u32 v87, {VPB}, v87
    """)
    a(f"s_waitcnt vmcnt({nq2})")
    for m in range(2):
        o = RB + 16*m
        for i in range(4):
            a(f"v_add_f32 v{o+i}, v{o+i}, v{o+4+i}")
            a(f"v_add_f32 v{o+8+i}, v{o+8+i}, v{o+12+i}")
        for i in range(4):
            a(f"v_add_f32 v{o+i}, v{o+i}, v{o+8+i}")
        a(f"v_cvt_pk_bf16_f32 v{o}, v{o}, v{o+1}")
        a(f"v_cvt_pk_bf16_f32 v{o+1}, v{o+2}, v{o+3}")
    a(f"""
    ds_write_b16 v86, v{RB} offset:0
    ds_write_b16_d16_hi v86, v{RB} offset:{KP_PITCH}
    ds_write_b16 v86, v{RB+1} offset:{2*KP_PITCH}
    ds_write_b16_d16_hi v86, v{RB+1} offset:{3*KP_PITCH}
    ds_write_b64 v87, {v(RB+16,2)}
    s_waitcnt lgkmcnt(0)
    """)
    a.label("L_pay_done")
    a("s_barrier")
    stamp(7)
    A1 = 8
    B02 = 32
    B1 = 48
    QF = 128
    DD = 176
    a(f"""
    v_and_b32 v4, 7, v7
    v_mul_u32_u24 v4, {KP_PITCH}, v4
    v_lshl_add_u32 v4, v6, 4, v4
    v_add_u32 v64, {KPB}, v4           ; A1 addr
    v_lshrrev_b32 v4, 1, v6            ; g>>1
    v_and_b32 v5, 1, v6                ; g&1
    v_mul_u32_u24 v65, 144, v7         ; 144c
    v_mul_u32_u24 v66, 1152, v4
    v_add_u32 v66, v66, v65
    v_lshl_add_u32 v66, v5, 3, v66
    v_add_u32 v66, {VPB}, v66          ; B02 addr
    v_lshrrev_b32 v67, 3, v7           ; c>>3
    v_cmp_eq_u32 vcc, v67, v4
    v_mul_u32_u24 v67, {144*24}, v4
    v_sub_u32 v67, v65, v67            ; g>>1 ? 144c-144*24 : 144c
    v_add_u32 v67, {144*16 + VPB}, v67 ; g<2: 144(16+c) ; g>=2: 144(c-8)
    v_mov_b32 v68, {ZB}
    v_cndmask_b32 v67, v68, v67, vcc
    v_lshl_add_u32 v67, v5, 3, v67     ; B1 addr
    """)
    for s6 in range(6):
        a(f"ds_read_b128 {v(A1+4*s6,4)}, v64 offset:{64*s6}")
    for t8 in range(8):
        a(f"ds_read_b64 {v(B02+2*t8,2)}, v66 offset:{16*t8}")
    for t8 in range(8):
        a(f"ds_read_b64 {v(B1+2*t8,2)}, v67 offset:{16*t8}")
    a(f"""
    v_mul_u32_u24 v4, 768, v7
    v_add_u32 v4, s55, v4
    """)
    for aa in range(4):
        a(f"""
        v_add_u32 v5, {4*aa}, v6
        v_xor_b32 v5, v5, v7
        v_lshl_add_u32 v{68+aa}, v5, 4, v4
        """)
    a("s_waitcnt vmcnt(0)")
    stamp(8)
    for u in range(12):
        a(f"ds_read_b128 {v(QF+4*u,4)}, v{68+(u&3)} offset:{QB + (u>>2)*256}")
    a(f"""
    s_mov_b32 s60, {f2u(192**-0.5):#x}
    s_mov_b32 s61, {f2u(1.4426950408889634):#x}
    v_cmp_gt_u32 vcc, 32, v1           ; lanes g<2
    v_lshlrev_b32 v72, 4, v7
    v_mul_u32_u24 v73, 3072, v6
    v_add_u32 v72, v72, v73            ; O voffset
    """)
    a("s_waitcnt lgkmcnt(0)")
    for s6 in range(6):
        cin0 = "0" if s6 == 0 else v(DD,4)
        cin1 = "0" if s6 == 0 else v(DD+4,4)
        a(f"v_mfma_f32_16x16x32_bf16 {v(DD,4)}, {v(A1+4*s6,4)}, {v(QF+4*s6,4)}, {cin0}")
        a(f"v_mfma_f32_16x16x32_bf16 {v(DD+4,4)}, {v(A1+4*s6,4)}, {v(QF+4*(6+s6),4)}, {cin1}")
    a("s_nop 7")
    S0 = 76
    for i in range(4):
        a(f"v_cndmask_b32 v{S0+i}, v{DD+4+i}, v{DD+i}, vcc")
    a(f"""
    v_cvt_pk_bf16_f32 v80, v{S0}, v{S0+1}
    v_cvt_pk_bf16_f32 v81, v{S0+2}, v{S0+3}
    v_lshlrev_b32 v{S0}, 16, v80
    v_and_b32 v{S0+1}, 0xffff0000, v80
    v_lshlrev_b32 v{S0+2}, 16, v81
    v_and_b32 v{S0+3}, 0xffff0000, v81
    v_mul_f32 v{S0}, s60, v{S0}
    v_mul_f32 v{S0+1}, s60, v{S0+1}
    v_mul_f32 v{S0+2}, s60, v{S0+2}
    v_mul_f32 v{S0+3}, s60, v{S0+3}
    v_cvt_pk_bf16_f32 v80, v{S0}, v{S0+1}
    v_cvt_pk_bf16_f32 v81, v{S0+2}, v{S0+3}
    v_lshlrev_b32 v{S0}, 16, v80
    v_and_b32 v{S0+1}, 0xffff0000, v80
    v_lshlrev_b32 v{S0+2}, 16, v81
    v_and_b32 v{S0+3}, 0xffff0000, v81
    v_max_f32 v80, v{S0}, v{S0+1}
    v_max3_f32 v80, v{S0+2}, v{S0+3}, v80
    v_mov_b32 v81, v80
    s_nop 1
    v_permlane16_swap_b32 v80, v81
    s_nop 1
    v_max_f32 v80, v80, v81
    v_sub_f32 v{S0}, v{S0}, v80
    v_sub_f32 v{S0+1}, v{S0+1}, v80
    v_sub_f32 v{S0+2}, v{S0+2}, v80
    v_sub_f32 v{S0+3}, v{S0+3}, v80
    v_mul_f32 v{S0}, s61, v{S0}
    v_mul_f32 v{S0+1}, s61, v{S0+1}
    v_mul_f32 v{S0+2}, s61, v{S0+2}
    v_mul_f32 v{S0+3}, s61, v{S0+3}
    v_exp_f32 v{S0}, v{S0}
    v_exp_f32 v{S0+1}, v{S0+1}
    v_exp_f32 v{S0+2}, v{S0+2}
    v_exp_f32 v{S0+3}, v{S0+3}
    s_nop 0
    v_add_f32 v80, v{S0}, v{S0+1}
    v_add_f32 v81, v{S0+2}, v{S0+3}
    v_add_f32 v80, v80, v81
    v_mov_b32 v81, v80
    s_nop 1
    v_permlane16_swap_b32 v80, v81
    s_nop 1
    v_add_f32 v80, v80, v81
    v_rcp_f32 v80, v80
    s_nop 0
    v_mul_f32 v{S0}, v{S0}, v80
    v_mul_f32 v{S0+1}, v{S0+1}, v80
    v_mul_f32 v{S0+2}, v{S0+2}, v80
    v_mul_f32 v{S0+3}, v{S0+3}, v80
    v_cvt_pk_bf16_f32 v82, v{S0}, v{S0+1}
    v_cvt_pk_bf16_f32 v83, v{S0+2}, v{S0+3}
    v_mov_b32 v80, 0
    v_cndmask_b32 v84, v80, v82, vcc   ; A2_E
    v_cndmask_b32 v85, v80, v83, vcc
    v_cndmask_b32 v86, v82, v80, vcc   ; A2_O
    v_cndmask_b32 v87, v83, v80, vcc
    s_nop 1
    """)
    def seg_mfma(seg, base):
        A = {0: "v[84:85]", 1: "v[82:83]", 2: "v[86:87]"}[seg]
        for t8 in range(8):
            B = v((B1 if seg == 1 else B02) + 2*t8, 2)
            a(f"v_mfma_f32_16x16x16_bf16 {v(base+4*t8,4)}, {A}, {B}, 0")
    def seg_store(seg, base, out):
        for i in range(4):
            for q in range(4):
                a(f"v_cvt_pk_bf16_f32 v{out+4*i+q}, v{base+4*(2*q)+i}, v{base+4*(2*q+1)+i}")
        for i in range(4):
            a(f"buffer_store_dwordx4 {v(out+4*i,4)}, v72, s[32:35], s55 offen offset:{768*i+256*seg} {opt.oflag}")
    seg_mfma(0, DD)
    seg_mfma(1, DD+32)
    seg_store(0, DD, 88)
    seg_mfma(2, DD)
    seg_store(1, DD+32, 104)
    a("s_nop 7")
    seg_store(2, DD, 88+32)
    stamp(9)
    if stamps:
        a("s_waitcnt vmcnt(0)")
        stamp(10)
        a(f"s_cmp_lg_u32 s44, {opt.stampwave}")
        a("s_cbranch_scc1 L_end")
        if opt.dbgstamps:
            a("s_mov_b64 exec, 1")
            a("v_mov_b32 v4, 0")
            a("s_not_b32 s70, s70")
            for k in range(11):
                a(f"v_mov_b32 v6, s{70+2*k}")
                a(f"global_atomic_umax v4, v6, s[16:17] offset:{4*k} sc1")
                a("s_nop 1")
            a("s_endpgm")
        a(f"""
        s_lshl_b32 s60, s2, 7
        s_add_u32 s60, s60, 0x8000000
        s_add_u32 s62, s18, s60
        s_addc_u32 s63, s19, 0
        s_mov_b64 exec, 1
        v_mov_b32 v4, 0
        """)
        for k in range(11):
            a(f"v_mov_b32 v6, s{70+2*k}")
            a(f"v_mov_b32 v7, s{71+2*k}")
            a(f"global_store_dwordx2 v4, v[6:7], s[62:63] offset:{8*k}")
            a("s_nop 1")
    a.label("L_end")
    a("s_endpgm")
    return a.text()

HEADER = open("cdna_kernels/" + NAME + ".s.ref").read().split("; Override launch")[0]

def wrap(body, lds):
    out = HEADER
    out += "; Override launch geometry by editing the next line (default: block=256,\n"
    out += "; grid=ceil(out_elems/256), lds=0). Harness parses it; keep it on one line.\n"
    out += f"; @launch grid=(256,1,1) block=(512,1,1) lds={lds}\n"
    out += f""".amdgcn_target "amdgcn-amd-amdhsa--gfx950"
.text
.globl {NAME}_kernel
.p2align 8
.type {NAME}_kernel,@function
{NAME}_kernel:
"""
    out += body
    out += f""".section .rodata,"a"
.p2align 6
.amdhsa_kernel {NAME}_kernel
  .amdhsa_next_free_vgpr 256
  .amdhsa_next_free_sgpr 102
  .amdhsa_accum_offset 256
  .amdhsa_group_segment_fixed_size 0
  .amdhsa_kernarg_size 64
  .amdhsa_user_sgpr_count 2
  .amdhsa_user_sgpr_kernarg_segment_ptr 1
  .amdhsa_system_sgpr_workgroup_id_x 1
.end_amdhsa_kernel
"""
    return out

if __name__ == "__main__":
    ap = argparse.ArgumentParser()
    ap.add_argument("-o", default="k.s")
    ap.add_argument("--stamps", action="store_true")
    ap.add_argument("--stampwave", type=int, default=0)
    ap.add_argument("--dbgstamps", action="store_true")
    ap.add_argument("--nosync", action="store_true")
    ap.add_argument("--q0", type=int, default=12)
    ap.add_argument("--q1", type=int, default=12)
    ap.add_argument("--kvflag", default="")
    ap.add_argument("--qflag", default="")
    ap.add_argument("--oflag", default="")
    opt = ap.parse_args()
    open(opt.o, "w").write(wrap(gen(opt), LDS_BYTES))
    print("wrote", opt.o, "lds", LDS_BYTES)
```

```python
import struct, sys, argparse
from gen import Asm, v, s, f2u, NAME, HEADER

QB   = 0
PB   = 98304
KPB  = PB + 49152
KP_PITCH = 400
VPB  = KPB + 8 * KP_PITCH
ZB   = VPB + 24 * 144
LDS_BYTES = ZB + 512

def gen(opt):
    a = Asm()
    stamps = opt.stamps
    NST = 14
    def stamp(k):
        if not stamps: return
        a(f"s_memrealtime s[{70+2*k}:{71+2*k}]")
        a("s_waitcnt lgkmcnt(0)")
    a("s_cmp_ge_u32 s2, 256")
    a("s_cbranch_scc1 L_end")
    a("s_load_dwordx16 s[4:19], s[0:1], 0")
    if stamps: a("s_memrealtime s[70:71]")
    a(f"""
    s_and_b32 s40, s2, 7
    s_lshr_b32 s41, s2, 3
    s_and_b32 s41, s41, 3
    s_lshl_b32 s40, s40, 2
    s_add_u32 s40, s40, s41            ; s40 = head
    s_lshr_b32 s41, s2, 5              ; s41 = slot s (0..7)
    s_lshr_b32 s42, s41, 2             ; s42 = m (0: K/e, 1: V/f)
    s_and_b32 s43, s41, 3
    v_lshrrev_b32 v2, 6, v0
    v_and_b32 v1, 63, v0               ; lane
    v_readfirstlane_b32 s44, v2
    s_lshl_b32 s45, s40, 3
    s_add_u32 s45, s45, s41            ; s45 = h*8+s
    s_lshl_b32 s51, s40, 2
    s_add_u32 s51, s51, s43            ; h*4+j
    s_mul_i32 s51, s51, 196608
    s_mul_i32 s52, s45, 98304
    s_mul_i32 s53, s44, 24576
    s_add_u32 s46, s53, 0
    s_add_u32 s47, s53, 6144
    s_add_u32 s48, s53, 12288
    s_add_u32 s49, s53, 18432
    s_lshl_b32 s50, s43, 10
    s_lshl_b32 s54, s44, 7
    s_add_u32 s50, s50, s54            ; e soffset = j*1024 + w*128
    s_mul_i32 s55, s44, 12288
    s_mul_i32 s64, s45, 6144
    """)
    a(f"""
    v_lshrrev_b32 v4, 5, v1            ; hh
    v_and_b32 v5, 31, v1               ; c32
    v_mul_u32_u24 v4, 3072, v4
    v_mul_u32_u24 v5, 12, v5
    v_add_u32 v2, v4, v5
    v_lshrrev_b32 v6, 4, v1            ; v6 = g
    v_and_b32 v7, 15, v1               ; v7 = c / rho
    v_and_b32 v4, 7, v1
    v_lshlrev_b32 v4, 12, v4           ; (rho&7)*4096
    v_lshrrev_b32 v5, 5, v1            ; g>>1
    v_lshl_add_u32 v3, v5, 4, v4       ; + (g>>1)*16
    v_lshrrev_b32 v4, 3, v1
    v_xor_b32 v4, v4, v6
    v_and_b32 v4, 1, v4
    v_lshlrev_b32 v4, 30, v4
    v_or_b32 v3, v3, v4
    v_lshlrev_b32 v85, 4, v1           ; lane*16
    v_mov_b32 v88, -1
    v_mov_b32 v89, -1
    v_mov_b32 v90, -1
    v_mov_b32 v91, -1
    """)
    a("s_waitcnt lgkmcnt(0)")
    a(f"""
    s_cmp_eq_u32 s42, 0
    s_cselect_b32 s20, s6, s8
    s_cselect_b32 s21, s7, s9
    s_cselect_b32 s24, s10, s12
    s_cselect_b32 s25, s11, s13
    s_add_u32 s20, s20, s51
    s_addc_u32 s21, s21, 0
    s_mov_b32 s22, 196608
    s_mov_b32 s23, 0x20000
    s_mov_b32 s26, 32768
    s_mov_b32 s27, 0x20000
    s_mov_b32 s36, s18
    s_mov_b32 s37, s19
    s_mov_b32 s38, {256*6144}
    s_mov_b32 s39, 0x20000
    """)
    EB = 8
    ACC = 24
    FB = 48
    QV = 72
    LB = 128
    RB = 88
    a("s_cmp_lg_u32 s44, 0")
    a("s_cbranch_scc1 L_noclear")
    for t in range(6):
        if t == 4: a("s_add_u32 s65, s64, 4096")
        so = "s64" if t < 4 else "s65"
        a(f"buffer_store_dwordx4 v[88:91], v85, s[36:39], {so} offen offset:{(t%4)*1024} sc1")
    a.label("L_noclear")
    for b in range(4):
        a(f"buffer_load_dwordx4 {v(EB+4*b,4)}, v3, s[24:27], s50 offen offset:{32*b}")
    for b in range(4):
        for jj in range(8):
            a(f"buffer_load_dwordx3 {v(LB+32*b+4*jj,3)}, v2, s[20:23], s{46+b} offen offset:{384*jj} {opt.kvflag}")
    stamp(1)
    a(f"""
    s_add_u32 s28, s4, s52
    s_addc_u32 s29, s5, 0
    s_mov_b32 s30, 98304
    s_mov_b32 s31, 0x20000
    s_add_u32 s32, s14, s52
    s_addc_u32 s33, s15, 0
    s_mov_b32 s34, 98304
    s_mov_b32 s35, 0x20000
    """)
    a("v_lshlrev_b32 v4, 8, v6            ; gamma*256")
    for i in range(12):
        a(f"""
        v_add_u32 v5, {4*i}, v6
        v_mul_u32_u24 v5, 0x5556, v5
        v_lshrrev_b32 v5, 16, v5
        v_xor_b32 v5, v5, v7
        v_lshl_add_u32 v{QV+i}, v5, 4, v4
        """)
    a(f"s_mov_b32 s57, 0x05040100")
    a(f"s_mov_b32 s58, 0x07060302")
    a("s_cmp_lg_u32 s44, 0")
    a("s_cbranch_scc1 L_noflag")
    a(f"""
    v_mov_b32 v4, s45
    v_mov_b32 v5, 1
    s_waitcnt vmcnt(36)
    s_mov_b64 exec, 1
    global_store_byte v4, v5, s[16:17] sc1
    s_mov_b64 exec, -1
    """)
    a.label("L_noflag")
    a(f"""
    s_cmp_lg_u32 s44, 7
    s_cbranch_scc1 L_nozero
    v_mov_b32 v4, 0
    v_mov_b32 v5, 0
    v_lshlrev_b32 v84, 3, v1
    v_add_u32 v84, {ZB}, v84
    ds_write_b64 v84, v[4:5]
    """)
    a.label("L_nozero")
    if not opt.nobarA:
        a("s_barrier")
    stamp(2)
    a("s_lshl_b32 s61, s40, 3")
    a("v_mov_b32 v87, s61")
    a("s_cmp_lg_u32 s44, 0")
    a("s_cbranch_scc1 L_nochk")
    a(f"""
    global_load_dwordx2 v[92:93], v87, s[16:17] sc1
    """)
    a.label("L_nochk")
    def qdma(i0, i1):
        for i in range(i0, i1):
            if i % 4 == 0 or i == i0:
                grp = (i // 4) * 4096
                a(f"s_add_u32 s56, s55, {grp}")
                a(f"s_add_u32 m0, s56, {QB}" if QB else "s_mov_b32 m0, s56")
                a("s_nop 0")
            a(f"buffer_load_dwordx4 v{QV+i}, s[28:31], s56 offen offset:{(i%4)*1024} {opt.qflag} lds")
    nq0 = opt.q0
    qdma(0, nq0)
    stamp(3)
    for b in range(4):
        a(f"s_waitcnt vmcnt({nq0 + 24 - 8*b})")
        for t in range(6):
            u, p = t // 2, t % 2
            sel = "s58" if p else "s57"
            for m in range(4):
                lo = LB + 32*b + 4*(2*m) + u
                hi = LB + 32*b + 4*(2*m+1) + u
                a(f"v_perm_b32 v{FB+4*t+m}, v{hi}, v{lo}, {sel}")
        a("s_nop 1")
        for t in range(6):
            cin = "0" if b == 0 else v(ACC+4*t,4)
            a(f"v_mfma_f32_16x16x32_bf16 {v(ACC+4*t,4)}, {v(EB+4*b,4)}, {v(FB+4*t,4)}, {cin}")
    stamp(4)
    a(f"""
    s_mul_i32 s59, s44, 6144
    s_add_u32 s59, s59, {PB}
    v_add_u32 v86, s59, v85
    s_nop 5
    """)
    for t in range(6):
        a(f"ds_write_b128 v86, {v(ACC+4*t,4)} offset:{1024*t}")
    a("s_cmp_lg_u32 s44, 0")
    a("s_cbranch_scc1 L_chk_done")
    a("s_mov_b32 s62, 0")
    a.label("L_chk")
    a(f"""
    v_and_b32 v92, v92, v93
    s_nop 0
    v_readfirstlane_b32 s63, v92
    s_add_u32 s62, s62, 1
    s_cmp_eq_u32 s63, 0x01010101
    s_cbranch_scc1 L_chk_done
    s_cmp_gt_u32 s62, 100000
    s_cbranch_scc1 L_chk_done
    s_sleep 2
    global_load_dwordx2 v[92:93], v87, s[16:17] sc1
    s_waitcnt vmcnt(0)
    s_branch L_chk
    """)
    a.label("L_chk_done")
    a("s_waitcnt lgkmcnt(0)")
    a("s_barrier")
    stamp(5)
    a("s_cmp_ge_u32 s44, 6")
    a("s_cbranch_scc1 L_red_done")
    a(f"""
    s_lshl_b32 s59, s44, 10
    s_add_u32 s60, s59, {PB}
    v_add_u32 v86, s60, v85
    """)
    for w2 in range(8):
        a(f"ds_read_b128 {v(RB+4*w2,4)}, v86 offset:{6144*w2}")
    a(f"""
    s_add_u32 s60, s64, s59            ; slot*6144 + w*1024
    v_mov_b32 v84, 0x7fc00000
    """)
    a("s_waitcnt lgkmcnt(0)")
    for st in (1, 2, 4):
        for w2 in range(0, 8, 2*st):
            for i in range(4):
                a(f"v_add_f32 v{RB+4*w2+i}, v{RB+4*w2+i}, v{RB+4*(w2+st)+i}")
    for i in range(4):
        a(f"v_cmp_eq_u32 s[{66+0}:{67}], -1, v{RB+i}")
        a("s_nop 1")
        a(f"v_cndmask_b32 v{RB+i}, v{RB+i}, v84, s[66:67]")
    a(f"buffer_store_dwordx4 {v(RB,4)}, v85, s[36:39], s60 offen sc1")
    a.label("L_red_done")
    stamp(6)
    qdma(nq0, opt.q1)
    nq2 = 12 - opt.q1
    a("s_cmp_ge_u32 s44, 6")
    a("s_cbranch_scc1 L_pay_skip")
    if opt.delay:
        a(f"s_sleep {opt.delay}")
    a(f"""
    s_mul_i32 s65, s40, {8*6144}
    s_lshl_b32 s59, s44, 10
    s_add_u32 s65, s65, s59
    s_mov_b32 s60, s65
    """)
    for k in range(8):
        a(f"buffer_load_dwordx4 {v(RB+4*k,4)}, v85, s[36:39], s60 offen sc1")
        if k < 7: a("s_add_u32 s60, s60, 6144")
    a.label("L_pay_skip")
    qdma(opt.q1, 12)
    a("s_cmp_ge_u32 s44, 6")
    a("s_cbranch_scc1 L_pay_done")
    a(f"""
    v_lshrrev_b32 v4, 1, v6            ; g>>1
    v_mul_u32_u24 v4, 96, v4
    v_mul_u32_u24 v5, 6, v7
    v_add_u32 v4, v4, v5
    v_add_u32 v4, s44, v4              ; d
    v_and_b32 v5, 1, v6                ; g&1
    v_mul_u32_u24 v86, {4*KP_PITCH}, v5
    v_lshl_add_u32 v86, v4, 1, v86
    v_add_u32 v86, {KPB}, v86
    v_lshrrev_b32 v87, 3, v4
    v_add_u32 v87, v87, v4
    v_lshlrev_b32 v87, 4, v87
    v_lshl_add_u32 v87, v5, 3, v87
    v_add_u32 v87, {VPB}, v87
    s_mov_b32 s62, 0
    """)
    a(f"s_waitcnt vmcnt({nq2})")
    stamp(7)
    a.label("L_pchk")
    a(f"v_max_u32 v4, v{RB}, v{RB+1}")
    for k in range(2, 32, 2):
        a(f"v_max3_u32 v4, v{RB+k}, v{RB+k+1}, v4")
    a(f"""
    v_cmp_eq_u32 vcc, -1, v4
    s_add_u32 s62, s62, 1
    s_cmp_eq_u64 vcc, 0
    s_cbranch_scc1 L_pok
    s_cmp_gt_u32 s62, 100000
    s_cbranch_scc1 L_pok
    s_sleep {opt.retry_sleep}
    s_mov_b32 s60, s65
    """)
    for k in range(8):
        a(f"buffer_load_dwordx4 {v(RB+4*k,4)}, v85, s[36:39], s60 offen sc1")
        if k < 7: a("s_add_u32 s60, s60, 6144")
    a("s_waitcnt vmcnt(0)")
    a("s_branch L_pchk")
    a.label("L_pok")
    stamp(8)
    for m in range(2):
        o = RB + 16*m
        for i in range(4):
            a(f"v_add_f32 v{o+i}, v{o+i}, v{o+4+i}")
            a(f"v_add_f32 v{o+8+i}, v{o+8+i}, v{o+12+i}")
        for i in range(4):
            a(f"v_add_f32 v{o+i}, v{o+i}, v{o+8+i}")
        a(f"v_cvt_pk_bf16_f32 v{o}, v{o}, v{o+1}")
        a(f"v_cvt_pk_bf16_f32 v{o+1}, v{o+2}, v{o+3}")
    a(f"""
    ds_write_b16 v86, v{RB} offset:0
    ds_write_b16_d16_hi v86, v{RB} offset:{KP_PITCH}
    ds_write_b16 v86, v{RB+1} offset:{2*KP_PITCH}
    ds_write_b16_d16_hi v86, v{RB+1} offset:{3*KP_PITCH}
    ds_write_b64 v87, {v(RB+16,2)}
    """)
    a.label("L_pay_done")
    A1 = 8
    B02 = 32
    B1 = 48
    QF = 128
    DD = 176
    a(f"""
    v_and_b32 v4, 7, v7
    v_mul_u32_u24 v4, {KP_PITCH}, v4
    v_lshl_add_u32 v4, v6, 4, v4
    v_add_u32 v64, {KPB}, v4           ; A1 addr
    v_lshrrev_b32 v4, 1, v6            ; g>>1
    v_and_b32 v5, 1, v6                ; g&1
    v_mul_u32_u24 v65, 144, v7         ; 144c
    v_mul_u32_u24 v66, 1152, v4
    v_add_u32 v66, v66, v65
    v_lshl_add_u32 v66, v5, 3, v66
    v_add_u32 v66, {VPB}, v66          ; B02 addr
    v_lshrrev_b32 v67, 3, v7           ; c>>3
    v_cmp_eq_u32 vcc, v67, v4
    v_mul_u32_u24 v67, {144*24}, v4
    v_sub_u32 v67, v65, v67            ; g>>1 ? 144c-144*24 : 144c
    v_add_u32 v67, {144*16 + VPB}, v67 ; g<2: 144(16+c) ; g>=2: 144(c-8)
    v_mov_b32 v68, {ZB}
    v_cndmask_b32 v67, v68, v67, vcc
    v_lshl_add_u32 v67, v5, 3, v67     ; B1 addr
    v_mul_u32_u24 v4, 768, v7
    v_add_u32 v4, s55, v4
    """)
    for aa in range(4):
        a(f"""
        v_add_u32 v5, {4*aa}, v6
        v_xor_b32 v5, v5, v7
        v_lshl_add_u32 v{68+aa}, v5, 4, v4
        """)
    a(f"""
    s_mov_b32 s60, {f2u(192**-0.5):#x}
    s_mov_b32 s61, {f2u(1.4426950408889634):#x}
    v_cmp_gt_u32 vcc, 32, v1           ; lanes g<2
    v_lshlrev_b32 v72, 4, v7
    v_mul_u32_u24 v73, 3072, v6
    v_add_u32 v72, v72, v73            ; O voffset
    """)
    a("s_waitcnt vmcnt(0)")
    for u in range(12):
        a(f"ds_read_b128 {v(QF+4*u,4)}, v{68+(u&3)} offset:{QB + (u>>2)*256}")
    a("s_waitcnt lgkmcnt(0)")
    a("s_barrier")
    stamp(9)
    for s6 in range(6):
        a(f"ds_read_b128 {v(A1+4*s6,4)}, v64 offset:{64*s6}")
    for t8 in range(8):
        a(f"ds_read_b64 {v(B02+2*t8,2)}, v66 offset:{16*t8}")
    a("s_waitcnt lgkmcnt(8)")
    for t8 in range(8):
        a(f"ds_read_b64 {v(B1+2*t8,2)}, v67 offset:{16*t8}")
    for s6 in range(6):
        cin0 = "0" if s6 == 0 else v(DD,4)
        cin1 = "0" if s6 == 0 else v(DD+4,4)
        a(f"v_mfma_f32_16x16x32_bf16 {v(DD,4)}, {v(A1+4*s6,4)}, {v(QF+4*s6,4)}, {cin0}")
        a(f"v_mfma_f32_16x16x32_bf16 {v(DD+4,4)}, {v(A1+4*s6,4)}, {v(QF+4*(6+s6),4)}, {cin1}")
    a("s_nop 7")
    S0 = 76
    for i in range(4):
        a(f"v_cndmask_b32 v{S0+i}, v{DD+4+i}, v{DD+i}, vcc")
    a(f"""
    v_cvt_pk_bf16_f32 v80, v{S0}, v{S0+1}
    v_cvt_pk_bf16_f32 v81, v{S0+2}, v{S0+3}
    v_lshlrev_b32 v{S0}, 16, v80
    v_and_b32 v{S0+1}, 0xffff0000, v80
    v_lshlrev_b32 v{S0+2}, 16, v81
    v_and_b32 v{S0+3}, 0xffff0000, v81
    v_mul_f32 v{S0}, s60, v{S0}
    v_mul_f32 v{S0+1}, s60, v{S0+1}
    v_mul_f32 v{S0+2}, s60, v{S0+2}
    v_mul_f32 v{S0+3}, s60, v{S0+3}
    v_cvt_pk_bf16_f32 v80, v{S0}, v{S0+1}
    v_cvt_pk_bf16_f32 v81, v{S0+2}, v{S0+3}
    v_lshlrev_b32 v{S0}, 16, v80
    v_and_b32 v{S0+1}, 0xffff0000, v80
    v_lshlrev_b32 v{S0+2}, 16, v81
    v_and_b32 v{S0+3}, 0xffff0000, v81
    v_max_f32 v80, v{S0}, v{S0+1}
    v_max3_f32 v80, v{S0+2}, v{S0+3}, v80
    v_mov_b32 v81, v80
    s_nop 1
    v_permlane16_swap_b32 v80, v81
    s_nop 1
    v_max_f32 v80, v80, v81
    v_sub_f32 v{S0}, v{S0}, v80
    v_sub_f32 v{S0+1}, v{S0+1}, v80
    v_sub_f32 v{S0+2}, v{S0+2}, v80
    v_sub_f32 v{S0+3}, v{S0+3}, v80
    v_mul_f32 v{S0}, s61, v{S0}
    v_mul_f32 v{S0+1}, s61, v{S0+1}
    v_mul_f32 v{S0+2}, s61, v{S0+2}
    v_mul_f32 v{S0+3}, s61, v{S0+3}
    v_exp_f32 v{S0}, v{S0}
    v_exp_f32 v{S0+1}, v{S0+1}
    v_exp_f32 v{S0+2}, v{S0+2}
    v_exp_f32 v{S0+3}, v{S0+3}
    s_nop 0
    v_add_f32 v80, v{S0}, v{S0+1}
    v_add_f32 v81, v{S0+2}, v{S0+3}
    v_add_f32 v80, v80, v81
    v_mov_b32 v81, v80
    s_nop 1
    v_permlane16_swap_b32 v80, v81
    s_nop 1
    v_add_f32 v80, v80, v81
    v_rcp_f32 v80, v80
    s_nop 0
    v_mul_f32 v{S0}, v{S0}, v80
    v_mul_f32 v{S0+1}, v{S0+1}, v80
    v_mul_f32 v{S0+2}, v{S0+2}, v80
    v_mul_f32 v{S0+3}, v{S0+3}, v80
    v_cvt_pk_bf16_f32 v82, v{S0}, v{S0+1}
    v_cvt_pk_bf16_f32 v83, v{S0+2}, v{S0+3}
    v_mov_b32 v80, 0
    v_cndmask_b32 v84, v80, v82, vcc   ; A2_E
    v_cndmask_b32 v85, v80, v83, vcc
    v_cndmask_b32 v86, v82, v80, vcc   ; A2_O
    v_cndmask_b32 v87, v83, v80, vcc
    s_waitcnt lgkmcnt(0)
    s_nop 1
    """)
    def seg_mfma(seg, base):
        A = {0: "v[84:85]", 1: "v[82:83]", 2: "v[86:87]"}[seg]
        for t8 in range(8):
            B = v((B1 if seg == 1 else B02) + 2*t8, 2)
            a(f"v_mfma_f32_16x16x16_bf16 {v(base+4*t8,4)}, {A}, {B}, 0")
    def seg_store(seg, base, out):
        for i in range(4):
            for q in range(4):
                a(f"v_cvt_pk_bf16_f32 v{out+4*i+q}, v{base+4*(2*q)+i}, v{base+4*(2*q+1)+i}")
            a(f"buffer_store_dwordx4 {v(out+4*i,4)}, v72, s[32:35], s55 offen offset:{768*i+256*seg} {opt.oflag}")
    seg_mfma(0, DD)
    seg_mfma(1, DD+32)
    seg_store(0, DD, 88)
    seg_mfma(2, DD)
    seg_store(1, DD+32, 104)
    a("s_nop 7")
    seg_store(2, DD, 88+32)
    stamp(10)
    if stamps:
        a("s_waitcnt vmcnt(0)")
        stamp(11)
        a(f"s_mov_b32 s{70+2*12}, s62")
        a(f"s_mov_b32 s{71+2*12}, 0")
        a(f"s_cmp_lg_u32 s44, {opt.stampwave}")
        a("s_cbranch_scc1 L_end")
        a(f"""
        s_lshl_b32 s60, s2, 7
        s_add_u32 s60, s60, 0x8000000
        s_add_u32 s62, s18, s60
        s_addc_u32 s63, s19, 0
        s_mov_b64 exec, 1
        v_mov_b32 v4, 0
        """)
        for k in range(13):
            a(f"v_mov_b32 v6, s{70+2*k}")
            a(f"v_mov_b32 v7, s{71+2*k}")
            a(f"global_store_dwordx2 v4, v[6:7], s[62:63] offset:{8*k}")
            a("s_nop 1")
    a.label("L_end")
    a("s_endpgm")
    return a.text()

def wrap(body, lds, nvgpr=256):
    out = HEADER
    out += "; Override launch geometry by editing the next line (default: block=256,\n"
    out += "; grid=ceil(out_elems/256), lds=0). Harness parses it; keep it on one line.\n"
    out += f"; @launch grid=(256,1,1) block=(512,1,1) lds={lds}\n"
    out += f""".amdgcn_target "amdgcn-amd-amdhsa--gfx950"
.text
.globl {NAME}_kernel
.p2align 8
.type {NAME}_kernel,@function
{NAME}_kernel:
"""
    out += body
    out += f""".section .rodata,"a"
.p2align 6
.amdhsa_kernel {NAME}_kernel
  .amdhsa_next_free_vgpr {nvgpr}
  .amdhsa_next_free_sgpr 102
  .amdhsa_accum_offset {nvgpr}
  .amdhsa_group_segment_fixed_size 0
  .amdhsa_kernarg_size 64
  .amdhsa_user_sgpr_count 2
  .amdhsa_user_sgpr_kernarg_segment_ptr 1
  .amdhsa_system_sgpr_workgroup_id_x 1
.end_amdhsa_kernel
"""
    return out

if __name__ == "__main__":
    ap = argparse.ArgumentParser()
    ap.add_argument("-o", default="k.s")
    ap.add_argument("--stamps", action="store_true")
    ap.add_argument("--stampwave", type=int, default=0)
    ap.add_argument("--nobarA", action="store_true")
    ap.add_argument("--q0", type=int, default=8)
    ap.add_argument("--q1", type=int, default=8)
    ap.add_argument("--delay", type=int, default=0)
    ap.add_argument("--retry_sleep", type=int, default=4)
    ap.add_argument("--kvflag", default="nt")
    ap.add_argument("--qflag", default="nt")
    ap.add_argument("--oflag", default="nt")
    opt = ap.parse_args()
    open(opt.o, "w").write(wrap(gen(opt), LDS_BYTES))
    print("wrote", opt.o, "lds", LDS_BYTES)
```

```python
import struct, sys, argparse
from gen import Asm, v, s, f2u, NAME, HEADER
from gen2 import wrap

QB   = 0
PB   = 98304
KPB  = PB + 49152
KP_PITCH = 400
VPB  = KPB + 8 * KP_PITCH
ZB   = VPB + 24 * 144
MB   = ZB + 512
LDS_BYTES = MB + 16

def gen(opt):
    a = Asm()
    stamps = opt.stamps
    def stamp(k):
        if not stamps: return
        a(f"s_memrealtime s[{70+2*k}:{71+2*k}]")
        a("s_waitcnt lgkmcnt(0)")
    PK = 2 if opt.prio else 0
    def prio(p):
        if opt.prio: a(f"s_setprio {p}")
    a("s_cmp_ge_u32 s2, 256")
    a("s_cbranch_scc1 L_end")
    a("s_load_dwordx16 s[4:19], s[0:1], 0")
    if stamps: a("s_memrealtime s[70:71]")
    prio(2)
    a(f"""
    s_and_b32 s40, s2, 7
    s_lshr_b32 s41, s2, 3
    s_and_b32 s41, s41, 3
    s_lshl_b32 s40, s40, 2
    s_add_u32 s40, s40, s41            ; s40 = head
    s_lshr_b32 s41, s2, 5              ; s41 = slot s (0..7)
    s_lshr_b32 s42, s41, 2             ; s42 = m (0: K/e, 1: V/f)
    s_and_b32 s43, s41, 3
    v_lshrrev_b32 v2, 6, v0
    v_and_b32 v1, 63, v0               ; lane
    v_readfirstlane_b32 s44, v2
    s_lshl_b32 s45, s40, 3
    s_add_u32 s45, s45, s41            ; s45 = h*8+s
    s_lshl_b32 s51, s40, 2
    s_add_u32 s51, s51, s43            ; h*4+j
    s_mul_i32 s51, s51, 196608
    s_mul_i32 s52, s45, 98304
    s_mul_i32 s53, s44, 24576
    s_add_u32 s46, s53, 0
    s_add_u32 s47, s53, 6144
    s_add_u32 s48, s53, 12288
    s_add_u32 s49, s53, 18432
    s_lshl_b32 s50, s43, 10
    s_lshl_b32 s54, s44, 7
    s_add_u32 s50, s50, s54            ; e soffset = j*1024 + w*128
    s_mul_i32 s55, s44, 12288
    s_mul_i32 s64, s45, 6144
    s_getreg_b32 s69, hwreg(HW_REG_XCC_ID)
    """)
    a(f"""
    v_lshrrev_b32 v4, 5, v1            ; hh
    v_and_b32 v5, 31, v1               ; c32
    v_mul_u32_u24 v4, 3072, v4
    v_mul_u32_u24 v5, 12, v5
    v_add_u32 v2, v4, v5
    v_lshrrev_b32 v6, 4, v1            ; v6 = g
    v_and_b32 v7, 15, v1               ; v7 = c / rho
    v_and_b32 v4, 7, v1
    v_lshlrev_b32 v4, 12, v4           ; (rho&7)*4096
    v_lshrrev_b32 v5, 5, v1            ; g>>1
    v_lshl_add_u32 v3, v5, 4, v4       ; + (g>>1)*16
    v_lshrrev_b32 v4, 3, v1
    v_xor_b32 v4, v4, v6
    v_and_b32 v4, 1, v4
    v_lshlrev_b32 v4, 30, v4
    v_or_b32 v3, v3, v4
    v_lshlrev_b32 v85, 4, v1           ; lane*16
    v_mov_b32 v88, -1
    v_mov_b32 v89, -1
    v_mov_b32 v90, -1
    v_mov_b32 v91, -1
    s_lshl_b32 s61, s40, 3
    v_mov_b32 v87, s61
    s_and_b32 s69, s69, 0x7f
    s_or_b32 s69, s69, 0x80
    """)
    a("s_waitcnt lgkmcnt(0)")
    a(f"""
    s_mov_b32 s36, s18
    s_mov_b32 s37, s19
    s_mov_b32 s38, {256*6144}
    s_mov_b32 s39, 0x20000
    s_cmp_eq_u32 s42, 0
    s_cselect_b32 s20, s6, s8
    s_cselect_b32 s21, s7, s9
    s_cselect_b32 s24, s10, s12
    s_cselect_b32 s25, s11, s13
    s_add_u32 s20, s20, s51
    s_addc_u32 s21, s21, 0
    s_mov_b32 s22, 196608
    s_mov_b32 s23, 0x20000
    s_mov_b32 s26, 32768
    s_mov_b32 s27, 0x20000
    """)
    EB = 8
    ACC = 24
    FB = 48
    QV = 72
    LB = 128
    RB = 88
    PAY = 128
    CW = opt.clearwave
    a(f"s_cmp_lg_u32 s44, {CW}")
    a("s_cbranch_scc1 L_noclear")
    prio(3)
    for t in range(6):
        if t == 4: a("s_add_u32 s65, s64, 4096")
        so = "s64" if t < 4 else "s65"
        a(f"buffer_store_dwordx4 v[88:91], v85, s[36:39], {so} offen offset:{(t%4)*1024} sc1")
    if opt.pretouch:
        for t in range(6):
            so = "s64" if t < 4 else "s65"
            a(f"buffer_store_dwordx4 v[88:91], v85, s[36:39], {so} offen offset:{(t%4)*1024}")
    a(f"""
    v_mov_b32 v4, s45
    v_mov_b32 v5, s69
    s_waitcnt vmcnt(0)
    s_mov_b64 exec, 1
    global_store_byte v4, v5, s[16:17] sc1
    s_mov_b64 exec, -1
    """)
    a.label("L_noclear")
    for b in range(4):
        a(f"buffer_load_dwordx4 {v(EB+4*b,4)}, v3, s[24:27], s50 offen offset:{32*b}")
    for b in range(4):
        for jj in range(8):
            a(f"buffer_load_dwordx3 {v(LB+32*b+4*jj,3)}, v2, s[20:23], s{46+b} offen offset:{384*jj} {opt.kvflag}")
    prio(0)
    stamp(1)
    a(f"""
    s_add_u32 s28, s4, s52
    s_addc_u32 s29, s5, 0
    s_mov_b32 s30, 98304
    s_mov_b32 s31, 0x20000
    s_add_u32 s32, s14, s52
    s_addc_u32 s33, s15, 0
    s_mov_b32 s34, 98304
    s_mov_b32 s35, 0x20000
    """)
    a("v_lshlrev_b32 v4, 8, v6            ; gamma*256")
    for i in range(12):
        a(f"""
        v_add_u32 v5, {4*i}, v6
        v_mul_u32_u24 v5, 0x5556, v5
        v_lshrrev_b32 v5, 16, v5
        v_xor_b32 v5, v5, v7
        v_lshl_add_u32 v{QV+i}, v5, 4, v4
        """)
    a(f"s_mov_b32 s57, 0x05040100")
    a(f"s_mov_b32 s58, 0x07060302")
    a(f"""
    s_cmp_lg_u32 s44, 7
    s_cbranch_scc1 L_nozero
    v_mov_b32 v4, 0
    v_mov_b32 v5, 0
    v_lshlrev_b32 v84, 3, v1
    v_add_u32 v84, {ZB}, v84
    ds_write_b64 v84, v[4:5]
    """)
    a.label("L_nozero")
    def qdma(i0, i1):
        for i in range(i0, i1):
            if i % 4 == 0 or i == i0:
                grp = (i // 4) * 4096
                a(f"s_add_u32 s56, s55, {grp}")
                a(f"s_add_u32 m0, s56, {QB}" if QB else "s_mov_b32 m0, s56")
                a("s_nop 0")
            a(f"buffer_load_dwordx4 v{QV+i}, s[28:31], s56 offen offset:{(i%4)*1024} {opt.qflag} lds")
    for b in range(4):
        a(f"s_waitcnt vmcnt({24 - 8*b})")
        if b == 0: stamp(2)
        for t in range(6):
            u, p = t // 2, t % 2
            sel = "s58" if p else "s57"
            for m in range(4):
                lo = LB + 32*b + 4*(2*m) + u
                hi = LB + 32*b + 4*(2*m+1) + u
                a(f"v_perm_b32 v{FB+4*t+m}, v{hi}, v{lo}, {sel}")
        a("s_nop 1")
        for t in range(6):
            cin = "0" if b == 0 else v(ACC+4*t,4)
            a(f"v_mfma_f32_16x16x32_bf16 {v(ACC+4*t,4)}, {v(EB+4*b,4)}, {v(FB+4*t,4)}, {cin}")
    a(f"""
    s_mul_i32 s59, s44, 6144
    s_add_u32 s59, s59, {PB}
    v_add_u32 v86, s59, v85
    s_nop 5
    """)
    for t in range(6):
        a(f"ds_write_b128 v86, {v(ACC+4*t,4)} offset:{1024*t}")
    stamp(3)
    a(f"s_cmp_lg_u32 s44, {CW}")
    a("s_cbranch_scc1 L_chk_done")
    a("s_mov_b32 s62, 0")
    prio(3)
    a.label("L_chk")
    a(f"""
    global_load_dwordx2 v[92:93], v87, s[16:17] sc1
    s_waitcnt vmcnt(0)
    v_and_b32 v94, v92, v93
    v_readfirstlane_b32 s66, v92
    v_readfirstlane_b32 s67, v93
    v_readfirstlane_b32 s63, v94
    s_add_u32 s62, s62, 1
    s_and_b32 s63, s63, 0x80808080
    s_cmp_eq_u32 s63, 0x80808080
    s_cbranch_scc1 L_chk_ok
    s_sleep 2
    s_cmp_lt_u32 s62, 100000
    s_cbranch_scc1 L_chk
    """)
    a.label("L_chk_ok")
    prio(0)
    a(f"""
    s_mul_i32 s63, s69, 0x01010101
    s_cmp_eq_u32 s66, s63
    s_cselect_b32 s66, 1, 0
    s_cmp_eq_u32 s67, s63
    s_cselect_b32 s67, 1, 0
    s_and_b32 s66, s66, s67
    s_and_b32 s66, s66, {1 if opt.fast else 0}
    v_mov_b32 v4, {MB}
    v_mov_b32 v5, s66
    ds_write_b32 v4, v5
    """)
    a.label("L_chk_done")
    if opt.q0:
        a("s_cmp_ge_u32 s44, 4")
        a("s_cbranch_scc1 L_noq0")
        qdma(0, opt.q0)
        a.label("L_noq0")
    stamp(4)
    a("s_waitcnt lgkmcnt(0)")
    a("s_barrier")
    stamp(5)
    a("s_cmp_ge_u32 s44, 6")
    a("s_cbranch_scc1 L_grpH")
    prio(3)
    a(f"""
    s_lshl_b32 s59, s44, 10
    s_add_u32 s60, s59, {PB}
    v_add_u32 v86, s60, v85
    v_mov_b32 v4, {MB}
    ds_read_b32 v84, v4
    """)
    for w2 in range(8):
        a(f"ds_read_b128 {v(RB+4*w2,4)}, v86 offset:{6144*w2}")
    a(f"""
    s_add_u32 s60, s64, s59            ; slot*6144 + w*1024
    v_mov_b32 v120, 0x7fc00000
    """)
    def reduce8(R):
        for st in (1, 2, 4):
            for w2 in range(0, 8, 2*st):
                for i in range(4):
                    a(f"v_add_f32 v{R+4*w2+i}, v{R+4*w2+i}, v{R+4*(w2+st)+i}")
        for i in range(4):
            a(f"v_cmp_eq_u32 s[{66+2*(i%2)}:{67+2*(i%2)}], -1, v{R+i}")
            if i % 2 == 1:
                a("s_nop 0")
                a(f"v_cndmask_b32 v{R+i-1}, v{R+i-1}, v120, s[66:67]")
                a(f"v_cndmask_b32 v{R+i}, v{R+i}, v120, s[68:69]")
    a("s_waitcnt lgkmcnt(0)")
    a("v_readfirstlane_b32 s63, v84       ; mode")
    reduce8(RB)
    a("s_cmp_eq_u32 s63, 1")
    a("s_cbranch_scc1 L_pub0f")
    a(f"buffer_store_dwordx4 {v(RB,4)}, v85, s[36:39], s60 offen sc1")
    a("s_branch L_pub0d")
    a.label("L_pub0f")
    a(f"buffer_store_dwordx4 {v(RB,4)}, v85, s[36:39], s60 offen")
    a.label("L_pub0d")
    a("s_cmp_ge_u32 s44, 4")
    a("s_cbranch_scc1 L_grpH")
    stamp(6)
    a(f"""
    s_mul_i32 s65, s40, {8*6144}
    s_lshl_b32 s59, s44, 10            ; w*1024
    s_add_u32 s66, s65, s59            ; combo0: (0,w)
    s_add_u32 s67, s66, 4096           ; (0,4+w)
    s_add_u32 s68, s66, {4*6144 - 2048}  ; (1,w-2)
    s_cmp_lt_u32 s44, 2
    s_cselect_b32 s67, s67, s68        ; combo1
    s_add_u32 s68, s66, {4*6144 + 2048}  ; combo2: (1,2+w)
    """)
    a(f"""
    v_lshrrev_b32 v4, 1, v6            ; g>>1
    v_mul_u32_u24 v4, 96, v4
    v_mul_u32_u24 v5, 6, v7
    v_add_u32 v4, v4, v5               ; dbase
    v_and_b32 v5, 1, v6                ; g&1
    v_mul_u32_u24 v84, {4*KP_PITCH}, v5
    v_add_u32 v84, {KPB}, v84
    v_lshlrev_b32 v5, 3, v5
    v_add_u32 v5, {VPB}, v5
    v_add_u32 v86, s44, v4             ; d for (0,w)
    v_lshl_add_u32 v112, v86, 1, v84
    s_add_u32 s59, s44, 4
    v_add_u32 v86, s59, v4
    v_lshl_add_u32 v113, v86, 1, v84
    s_sub_u32 s59, s44, 2
    v_add_u32 v86, s59, v4             ; d for (1,w-2)
    v_lshrrev_b32 v87, 3, v86
    v_add_u32 v87, v87, v86
    v_lshl_add_u32 v114, v87, 4, v5
    s_add_u32 s59, s44, 2
    v_add_u32 v86, s59, v4             ; d for (1,2+w)
    v_lshrrev_b32 v87, 3, v86
    v_add_u32 v87, v87, v86
    v_lshl_add_u32 v115, v87, 4, v5
    s_mov_b32 s62, 0
    """)
    if opt.delay:
        a(f"s_sleep {opt.delay}")
    def payload():
        for cb in range(3):
            a(f"s_mov_b32 s60, s{66+cb}")
            for j in range(4):
                a(f"buffer_load_dwordx4 {v(PAY+16*cb+4*j,4)}, v85, s[36:39], s60 offen sc1")
                if j < 3: a("s_add_u32 s60, s60, 6144")
    payload()
    nB = 12 - opt.q0
    if opt.bearly:
        prio(0)
        qdma(opt.q0, 12)
        a(f"s_waitcnt vmcnt({nB})")
    else:
        a(f"s_waitcnt vmcnt(0)")
    stamp(7)
    a.label("L_pchk")
    a(f"v_max_u32 v4, v{PAY}, v{PAY+1}")
    for k in range(2, 48, 2):
        a(f"v_max3_u32 v4, v{PAY+k}, v{PAY+k+1}, v4")
    a(f"""
    v_cmp_eq_u32 vcc, -1, v4
    s_add_u32 s62, s62, 1
    s_cmp_eq_u64 vcc, 0
    s_cbranch_scc1 L_pok
    s_cmp_gt_u32 s62, 100000
    s_cbranch_scc1 L_pok
    s_sleep {opt.retry_sleep}
    """)
    prio(3)
    payload()
    a("s_waitcnt vmcnt(0)")
    a("s_branch L_pchk")
    a.label("L_pok")
    prio(0)
    if not opt.bearly:
        qdma(opt.q0, 12)
    stamp(8)
    for cb in range(3):
        o = PAY + 16*cb
        for i in range(4):
            a(f"v_add_f32 v{o+i}, v{o+i}, v{o+4+i}")
            a(f"v_add_f32 v{o+8+i}, v{o+8+i}, v{o+12+i}")
        for i in range(4):
            a(f"v_add_f32 v{o+i}, v{o+i}, v{o+8+i}")
        a(f"v_cvt_pk_bf16_f32 v{o}, v{o}, v{o+1}")
        a(f"v_cvt_pk_bf16_f32 v{o+1}, v{o+2}, v{o+3}")
    def kpw(addr, o):
        a(f"""
        ds_write_b16 v{addr}, v{o} offset:0
        ds_write_b16_d16_hi v{addr}, v{o} offset:{KP_PITCH}
        ds_write_b16 v{addr}, v{o+1} offset:{2*KP_PITCH}
        ds_write_b16_d16_hi v{addr}, v{o+1} offset:{3*KP_PITCH}
        """)
    kpw(112, PAY)
    a(f"ds_write_b64 v115, {v(PAY+32,2)}")
    a("s_cmp_lt_u32 s44, 2")
    a("s_cbranch_scc1 L_c1k")
    a(f"ds_write_b64 v114, {v(PAY+16,2)}")
    a("s_branch L_pay_done")
    a.label("L_c1k")
    kpw(113, PAY+16)
    a("s_branch L_pay_done")
    a.label("L_grpH")
    prio(0)
    qdma(0, 12)
    stamp(6)
    a.label("L_pay_done")
    A1 = 8
    B02 = 32
    B1 = 48
    QF = 128
    DD = 176
    a(f"""
    v_and_b32 v4, 7, v7
    v_mul_u32_u24 v4, {KP_PITCH}, v4
    v_lshl_add_u32 v4, v6, 4, v4
    v_add_u32 v64, {KPB}, v4           ; A1 addr
    v_lshrrev_b32 v4, 1, v6            ; g>>1
    v_and_b32 v5, 1, v6                ; g&1
    v_mul_u32_u24 v65, 144, v7         ; 144c
    v_mul_u32_u24 v66, 1152, v4
    v_add_u32 v66, v66, v65
    v_lshl_add_u32 v66, v5, 3, v66
    v_add_u32 v66, {VPB}, v66          ; B02 addr
    v_lshrrev_b32 v67, 3, v7           ; c>>3
    v_cmp_eq_u32 vcc, v67, v4
    v_mul_u32_u24 v67, {144*24}, v4
    v_sub_u32 v67, v65, v67            ; g>>1 ? 144c-144*24 : 144c
    v_add_u32 v67, {144*16 + VPB}, v67 ; g<2: 144(16+c) ; g>=2: 144(c-8)
    v_mov_b32 v68, {ZB}
    v_cndmask_b32 v67, v68, v67, vcc
    v_lshl_add_u32 v67, v5, 3, v67     ; B1 addr
    v_mul_u32_u24 v4, 768, v7
    v_add_u32 v4, s55, v4
    """)
    for aa in range(4):
        a(f"""
        v_add_u32 v5, {4*aa}, v6
        v_xor_b32 v5, v5, v7
        v_lshl_add_u32 v{68+aa}, v5, 4, v4
        """)
    a(f"""
    s_mov_b32 s60, {f2u(192**-0.5):#x}
    s_mov_b32 s61, {f2u(1.4426950408889634):#x}
    v_cmp_gt_u32 vcc, 32, v1           ; lanes g<2
    v_lshlrev_b32 v116, 4, v7
    v_mul_u32_u24 v117, 3072, v6
    v_add_u32 v116, v116, v117         ; O voffset
    """)
    a("s_cmp_lt_u32 s44, 4")
    a("s_cbranch_scc1 L_noqpre")
    a("s_waitcnt vmcnt(0)")
    for u in range(12):
        a(f"ds_read_b128 {v(QF+4*u,4)}, v{68+(u&3)} offset:{QB + (u>>2)*256}")
    a.label("L_noqpre")
    a("s_waitcnt lgkmcnt(0)")
    a("s_barrier")
    stamp(9)
    for s6 in range(6):
        a(f"ds_read_b128 {v(A1+4*s6,4)}, v64 offset:{64*s6}")
    for t8 in range(8):
        a(f"ds_read_b64 {v(B02+2*t8,2)}, v66 offset:{16*t8}")
    a("s_cmp_ge_u32 s44, 4")
    a("s_cbranch_scc1 L_qdone")
    a("s_waitcnt vmcnt(0)")
    a("s_waitcnt lgkmcnt(0)")
    for u in range(12):
        a(f"ds_read_b128 {v(QF+4*u,4)}, v{68+(u&3)} offset:{QB + (u>>2)*256}")
    a.label("L_qdone")
    stamp(13)
    a("s_waitcnt lgkmcnt(0)")
    for t8 in range(8):
        a(f"ds_read_b64 {v(B1+2*t8,2)}, v67 offset:{16*t8}")
    for s6 in range(6):
        cin0 = "0" if s6 == 0 else v(DD,4)
        cin1 = "0" if s6 == 0 else v(DD+4,4)
        a(f"v_mfma_f32_16x16x32_bf16 {v(DD,4)}, {v(A1+4*s6,4)}, {v(QF+4*s6,4)}, {cin0}")
        a(f"v_mfma_f32_16x16x32_bf16 {v(DD+4,4)}, {v(A1+4*s6,4)}, {v(QF+4*(6+s6),4)}, {cin1}")
    a("s_nop 7")
    S0 = 76
    for i in range(4):
        a(f"v_cndmask_b32 v{S0+i}, v{DD+4+i}, v{DD+i}, vcc")
    a(f"""
    v_cvt_pk_bf16_f32 v80, v{S0}, v{S0+1}
    v_cvt_pk_bf16_f32 v81, v{S0+2}, v{S0+3}
    v_lshlrev_b32 v{S0}, 16, v80
    v_and_b32 v{S0+1}, 0xffff0000, v80
    v_lshlrev_b32 v{S0+2}, 16, v81
    v_and_b32 v{S0+3}, 0xffff0000, v81
    v_mul_f32 v{S0}, s60, v{S0}
    v_mul_f32 v{S0+1}, s60, v{S0+1}
    v_mul_f32 v{S0+2}, s60, v{S0+2}
    v_mul_f32 v{S0+3}, s60, v{S0+3}
    v_cvt_pk_bf16_f32 v80, v{S0}, v{S0+1}
    v_cvt_pk_bf16_f32 v81, v{S0+2}, v{S0+3}
    v_lshlrev_b32 v{S0}, 16, v80
    v_and_b32 v{S0+1}, 0xffff0000, v80
    v_lshlrev_b32 v{S0+2}, 16, v81
    v_and_b32 v{S0+3}, 0xffff0000, v81
    v_max_f32 v80, v{S0}, v{S0+1}
    v_max3_f32 v80, v{S0+2}, v{S0+3}, v80
    v_mov_b32 v81, v80
    s_nop 1
    v_permlane16_swap_b32 v80, v81
    s_nop 1
    v_max_f32 v80, v80, v81
    v_sub_f32 v{S0}, v{S0}, v80
    v_sub_f32 v{S0+1}, v{S0+1}, v80
    v_sub_f32 v{S0+2}, v{S0+2}, v80
    v_sub_f32 v{S0+3}, v{S0+3}, v80
    v_mul_f32 v{S0}, s61, v{S0}
    v_mul_f32 v{S0+1}, s61, v{S0+1}
    v_mul_f32 v{S0+2}, s61, v{S0+2}
    v_mul_f32 v{S0+3}, s61, v{S0+3}
    v_exp_f32 v{S0}, v{S0}
    v_exp_f32 v{S0+1}, v{S0+1}
    v_exp_f32 v{S0+2}, v{S0+2}
    v_exp_f32 v{S0+3}, v{S0+3}
    s_nop 0
    v_add_f32 v80, v{S0}, v{S0+1}
    v_add_f32 v81, v{S0+2}, v{S0+3}
    v_add_f32 v80, v80, v81
    v_mov_b32 v81, v80
    s_nop 1
    v_permlane16_swap_b32 v80, v81
    s_nop 1
    v_add_f32 v80, v80, v81
    v_rcp_f32 v80, v80
    s_nop 0
    v_mul_f32 v{S0}, v{S0}, v80
    v_mul_f32 v{S0+1}, v{S0+1}, v80
    v_mul_f32 v{S0+2}, v{S0+2}, v80
    v_mul_f32 v{S0+3}, v{S0+3}, v80
    v_cvt_pk_bf16_f32 v82, v{S0}, v{S0+1}
    v_cvt_pk_bf16_f32 v83, v{S0+2}, v{S0+3}
    v_mov_b32 v80, 0
    v_cndmask_b32 v84, v80, v82, vcc   ; A2_E
    v_cndmask_b32 v85, v80, v83, vcc
    v_cndmask_b32 v86, v82, v80, vcc   ; A2_O
    v_cndmask_b32 v87, v83, v80, vcc
    s_waitcnt lgkmcnt(0)
    s_nop 1
    """)
    stamp(12)
    def seg_mfma(seg, base):
        A = {0: "v[84:85]", 1: "v[82:83]", 2: "v[86:87]"}[seg]
        for t8 in range(8):
            B = v((B1 if seg == 1 else B02) + 2*t8, 2)
            a(f"v_mfma_f32_16x16x16_bf16 {v(base+4*t8,4)}, {A}, {B}, 0")
    def seg_store(seg, base, out):
        for i in range(4):
            for q in range(4):
                a(f"v_cvt_pk_bf16_f32 v{out+4*i+q}, v{base+4*(2*q)+i}, v{base+4*(2*q+1)+i}")
            a(f"buffer_store_dwordx4 {v(out+4*i,4)}, v116, s[32:35], s55 offen offset:{768*i+256*seg} {opt.oflag}")
    seg_mfma(0, DD)
    seg_mfma(1, DD+32)
    seg_store(0, DD, 88)
    seg_mfma(2, DD)
    seg_store(1, DD+32, 128)
    a("s_nop 7")
    seg_store(2, DD, 144)
    stamp(10)
    if stamps:
        a("s_waitcnt vmcnt(0)")
        stamp(11)
        a(f"s_mov_b32 s{70+2*14}, s62")
        a(f"s_mov_b32 s{71+2*14}, 0")
        a(f"""
        s_lshl_b32 s60, s2, 3
        s_add_u32 s60, s60, s44
        s_lshl_b32 s60, s60, 7
        s_add_u32 s60, s60, 0x8000000
        s_add_u32 s62, s18, s60
        s_addc_u32 s63, s19, 0
        s_mov_b64 exec, 1
        v_mov_b32 v4, 0
        """)
        for k in range(15):
            a(f"v_mov_b32 v6, s{70+2*k}")
            a(f"v_mov_b32 v7, s{71+2*k}")
            a(f"global_store_dwordx2 v4, v[6:7], s[62:63] offset:{8*k}")
            a("s_nop 1")
    a.label("L_end")
    a("s_endpgm")
    return a.text()

def parser():
    ap = argparse.ArgumentParser()
    ap.add_argument("-o", default="k.s")
    ap.add_argument("--stamps", action="store_true")
    ap.add_argument("--prio", type=int, default=1)
    ap.add_argument("--fast", type=int, default=1)
    ap.add_argument("--pretouch", type=int, default=0)
    ap.add_argument("--bearly", type=int, default=1)
    ap.add_argument("--clearwave", type=int, default=0)
    ap.add_argument("--q0", type=int, default=0)
    ap.add_argument("--delay", type=int, default=0)
    ap.add_argument("--retry_sleep", type=int, default=2)
    ap.add_argument("--kvflag", default="nt")
    ap.add_argument("--qflag", default="nt")
    ap.add_argument("--oflag", default="nt")
    return ap

if __name__ == "__main__":
    opt = parser().parse_args()
    open(opt.o, "w").write(wrap(gen(opt), LDS_BYTES))
    print("wrote", opt.o, "lds", LDS_BYTES)
```

```python
import struct, sys, argparse
from gen import Asm, v, s, f2u, NAME, HEADER
from gen2 import wrap

QB   = 0
PB   = 98304
KPB  = PB + 49152
KP_PITCH = 400
VPB  = KPB + 8 * KP_PITCH
ZB   = VPB + 24 * 144
MB   = ZB + 512
LDS_BYTES = MB + 16

def gen(opt):
    a = Asm()
    stamps = opt.stamps
    def stamp(k):
        if not stamps: return
        a(f"s_memrealtime s[{70+2*k}:{71+2*k}]")
        a("s_waitcnt lgkmcnt(0)")
    PK = 2 if opt.prio else 0
    def prio(p):
        if opt.prio: a(f"s_setprio {p}")
    a("s_cmp_ge_u32 s2, 256")
    a("s_cbranch_scc1 L_end")
    a("s_load_dwordx16 s[4:19], s[0:1], 0")
    if stamps: a("s_memrealtime s[70:71]")
    prio(2)
    a(f"""
    {"s_and_b32 s40, s2, 31" if opt.hmap == 1 else "s_and_b32 s40, s2, 7"}
    s_lshr_b32 s41, s2, 3
    s_and_b32 s41, s41, 3
    {"s_nop 0" if opt.hmap == 1 else "s_lshl_b32 s40, s40, 2"}
    {"s_nop 0" if opt.hmap == 1 else "s_add_u32 s40, s40, s41"}            ; s40 = head
    s_lshr_b32 s41, s2, 5              ; s41 = slot s (0..7)
    s_lshr_b32 s42, s41, 2             ; s42 = m (0: K/e, 1: V/f)
    s_and_b32 s43, s41, 3
    v_lshrrev_b32 v2, 6, v0
    v_and_b32 v1, 63, v0               ; lane
    v_readfirstlane_b32 s44, v2
    s_lshl_b32 s45, s40, 3
    s_add_u32 s45, s45, s41            ; s45 = h*8+s
    s_lshl_b32 s51, s40, 2
    s_add_u32 s51, s51, s43            ; h*4+j
    s_mul_i32 s51, s51, 196608
    s_mul_i32 s52, s45, 98304
    s_mul_i32 s53, s44, 24576
    s_add_u32 s46, s53, 0
    s_add_u32 s47, s53, 6144
    s_add_u32 s48, s53, 12288
    s_add_u32 s49, s53, 18432
    s_lshl_b32 s50, s43, 10
    s_lshl_b32 s54, s44, 7
    s_add_u32 s50, s50, s54            ; e soffset = j*1024 + w*128
    s_mul_i32 s55, s44, 12288
    s_mul_i32 s64, s45, 6144
    s_getreg_b32 s69, hwreg(HW_REG_XCC_ID)
    """)
    a(f"""
    v_lshrrev_b32 v4, 5, v1            ; hh
    v_and_b32 v5, 31, v1               ; c32
    v_mul_u32_u24 v4, 3072, v4
    v_mul_u32_u24 v5, 12, v5
    v_add_u32 v2, v4, v5
    v_lshrrev_b32 v6, 4, v1            ; v6 = g
    v_and_b32 v7, 15, v1               ; v7 = c / rho
    v_and_b32 v4, 7, v1
    v_lshlrev_b32 v4, 12, v4           ; (rho&7)*4096
    v_lshrrev_b32 v5, 5, v1            ; g>>1
    v_lshl_add_u32 v3, v5, 4, v4       ; + (g>>1)*16
    v_lshrrev_b32 v4, 3, v1
    v_xor_b32 v4, v4, v6
    v_and_b32 v4, 1, v4
    v_lshlrev_b32 v4, 30, v4
    v_or_b32 v3, v3, v4
    v_lshlrev_b32 v85, 4, v1           ; lane*16
    v_mov_b32 v88, -1
    v_mov_b32 v89, -1
    v_mov_b32 v90, -1
    v_mov_b32 v91, -1
    s_lshl_b32 s61, s40, 3
    v_mov_b32 v87, s61
    s_and_b32 s69, s69, 0x7f
    s_or_b32 s69, s69, 0x80
    """)
    a("s_waitcnt lgkmcnt(0)")
    a(f"""
    s_mov_b32 s36, s18
    s_mov_b32 s37, s19
    s_mov_b32 s38, {256*6144}
    s_mov_b32 s39, 0x20000
    s_cmp_eq_u32 s42, 0
    s_cselect_b32 s20, s6, s8
    s_cselect_b32 s21, s7, s9
    s_cselect_b32 s24, s10, s12
    s_cselect_b32 s25, s11, s13
    s_add_u32 s20, s20, s51
    s_addc_u32 s21, s21, 0
    s_mov_b32 s22, 196608
    s_mov_b32 s23, 0x20000
    s_mov_b32 s26, 32768
    s_mov_b32 s27, 0x20000
    """)
    EB = 8
    ACC = 24
    FB = 48
    QV = 72
    LB = 128
    RB = 88
    PAY = 128
    CW = opt.clearwave
    a(f"s_cmp_lg_u32 s44, {CW}")
    a("s_cbranch_scc1 L_noclear")
    prio(3)
    for t in range(6):
        if t == 4: a("s_add_u32 s65, s64, 4096")
        so = "s64" if t < 4 else "s65"
        a(f"buffer_store_dwordx4 v[88:91], v85, s[36:39], {so} offen offset:{(t%4)*1024} sc1")
    if opt.pretouch:
        for t in range(6):
            so = "s64" if t < 4 else "s65"
            a(f"buffer_store_dwordx4 v[88:91], v85, s[36:39], {so} offen offset:{(t%4)*1024}")
    a(f"""
    v_mov_b32 v4, s45
    v_mov_b32 v5, s69
    s_waitcnt vmcnt(0)
    s_mov_b64 exec, 1
    global_store_byte v4, v5, s[16:17] sc1
    s_mov_b64 exec, -1
    """)
    a.label("L_noclear")
    for b in range(4):
        a(f"buffer_load_dwordx4 {v(EB+4*b,4)}, v3, s[24:27], s50 offen offset:{32*b}")
    for b in range(4):
        for jj in range(8):
            a(f"buffer_load_dwordx3 {v(LB+32*b+4*jj,3)}, v2, s[20:23], s{46+b} offen offset:{384*jj} {opt.kvflag}")
    prio(0)
    stamp(1)
    a(f"""
    s_add_u32 s28, s4, s52
    s_addc_u32 s29, s5, 0
    s_mov_b32 s30, 98304
    s_mov_b32 s31, 0x20000
    s_add_u32 s32, s14, s52
    s_addc_u32 s33, s15, 0
    s_mov_b32 s34, 98304
    s_mov_b32 s35, 0x20000
    """)
    a("v_lshlrev_b32 v4, 8, v6            ; gamma*256")
    for i in range(12):
        a(f"""
        v_add_u32 v5, {4*i}, v6
        v_mul_u32_u24 v5, 0x5556, v5
        v_lshrrev_b32 v5, 16, v5
        v_xor_b32 v5, v5, v7
        v_lshl_add_u32 v{QV+i}, v5, 4, v4
        """)
    a(f"s_mov_b32 s57, 0x05040100")
    a(f"s_mov_b32 s58, 0x07060302")
    a(f"""
    s_cmp_lg_u32 s44, 7
    s_cbranch_scc1 L_nozero
    v_mov_b32 v4, 0
    v_mov_b32 v5, 0
    v_lshlrev_b32 v84, 3, v1
    v_add_u32 v84, {ZB}, v84
    ds_write_b64 v84, v[4:5]
    """)
    a.label("L_nozero")
    def qdma(i0, i1):
        for i in range(i0, i1):
            if i % 4 == 0 or i == i0:
                grp = (i // 4) * 4096
                a(f"s_add_u32 s56, s55, {grp}")
                a(f"s_add_u32 m0, s56, {QB}" if QB else "s_mov_b32 m0, s56")
                a("s_nop 0")
            a(f"buffer_load_dwordx4 v{QV+i}, s[28:31], s56 offen offset:{(i%4)*1024} {opt.qflag} lds")
    nq = 12 - opt.qlate
    qdma(0, nq)
    for b in range(4):
        a(f"s_waitcnt vmcnt({nq + 24 - 8*b})")
        if b == 0: stamp(2)
        for t in range(6):
            u, p = t // 2, t % 2
            sel = "s58" if p else "s57"
            for m in range(4):
                lo = LB + 32*b + 4*(2*m) + u
                hi = LB + 32*b + 4*(2*m+1) + u
                a(f"v_perm_b32 v{FB+4*t+m}, v{hi}, v{lo}, {sel}")
        a("s_nop 1")
        for t in range(6):
            cin = "0" if b == 0 else v(ACC+4*t,4)
            a(f"v_mfma_f32_16x16x32_bf16 {v(ACC+4*t,4)}, {v(EB+4*b,4)}, {v(FB+4*t,4)}, {cin}")
    a(f"""
    s_mul_i32 s59, s44, 6144
    s_add_u32 s59, s59, {PB}
    v_add_u32 v86, s59, v85
    s_nop 5
    """)
    for t in range(6):
        a(f"ds_write_b128 v86, {v(ACC+4*t,4)} offset:{1024*t}")
    stamp(3)
    a(f"s_cmp_lg_u32 s44, {CW}")
    a("s_cbranch_scc1 L_chk_done")
    a("s_mov_b32 s62, 0")
    prio(3)
    a.label("L_chk")
    a(f"""
    global_load_dwordx2 v[92:93], v87, s[16:17] sc1
    s_waitcnt vmcnt(0)
    v_and_b32 v94, v92, v93
    v_readfirstlane_b32 s66, v92
    v_readfirstlane_b32 s67, v93
    v_readfirstlane_b32 s63, v94
    s_add_u32 s62, s62, 1
    s_and_b32 s63, s63, 0x80808080
    s_cmp_eq_u32 s63, 0x80808080
    s_cbranch_scc1 L_chk_ok
    s_sleep 2
    s_cmp_lt_u32 s62, 100000
    s_cbranch_scc1 L_chk
    """)
    a.label("L_chk_ok")
    prio(0)
    a(f"""
    s_mul_i32 s63, s69, 0x01010101
    s_cmp_eq_u32 s66, s63
    s_cselect_b32 s66, 1, 0
    s_cmp_eq_u32 s67, s63
    s_cselect_b32 s67, 1, 0
    s_and_b32 s66, s66, s67
    s_and_b32 s66, s66, {1 if opt.fast else 0}
    v_mov_b32 v4, {MB}
    v_mov_b32 v5, s66
    ds_write_b32 v4, v5
    """)
    a.label("L_chk_done")
    stamp(4)
    a("s_waitcnt lgkmcnt(0)")
    a("s_barrier")
    stamp(5)
    a("s_cmp_ge_u32 s44, 6")
    a("s_cbranch_scc1 L_w67")
    prio(3)
    a(f"""
    s_lshl_b32 s59, s44, 10
    s_add_u32 s60, s59, {PB}
    v_add_u32 v86, s60, v85
    v_mov_b32 v4, {MB}
    ds_read_b32 v84, v4
    """)
    for w2 in range(8):
        a(f"ds_read_b128 {v(RB+4*w2,4)}, v86 offset:{6144*w2}")
    a(f"""
    s_add_u32 s60, s64, s59            ; slot*6144 + w*1024
    v_mov_b32 v120, 0x7fc00000
    """)
    def reduce8(R):
        for st in (1, 2, 4):
            for w2 in range(0, 8, 2*st):
                for i in range(4):
                    a(f"v_add_f32 v{R+4*w2+i}, v{R+4*w2+i}, v{R+4*(w2+st)+i}")
        for i in range(4):
            a(f"v_cmp_eq_u32 s[{66+2*(i%2)}:{67+2*(i%2)}], -1, v{R+i}")
            if i % 2 == 1:
                a("s_nop 0")
                a(f"v_cndmask_b32 v{R+i-1}, v{R+i-1}, v120, s[66:67]")
                a(f"v_cndmask_b32 v{R+i}, v{R+i}, v120, s[68:69]")
    a("s_waitcnt lgkmcnt(0)")
    a("v_readfirstlane_b32 s63, v84       ; mode")
    reduce8(RB)
    a("s_cmp_eq_u32 s63, 1")
    a("s_cbranch_scc1 L_pub0f")
    a(f"buffer_store_dwordx4 {v(RB,4)}, v85, s[36:39], s60 offen sc1")
    a("s_branch L_pub0d")
    a.label("L_pub0f")
    a(f"buffer_store_dwordx4 {v(RB,4)}, v85, s[36:39], s60 offen")
    a.label("L_pub0d")
    a("s_cmp_ge_u32 s44, 4")
    a("s_cbranch_scc1 L_w45")
    stamp(6)
    a(f"""
    s_mul_i32 s65, s40, {8*6144}
    s_lshl_b32 s59, s44, 10            ; w*1024
    s_add_u32 s66, s65, s59            ; combo0: (0,w)
    s_add_u32 s67, s66, 4096           ; (0,4+w)
    s_add_u32 s68, s66, {4*6144 - 2048}  ; (1,w-2)
    s_cmp_lt_u32 s44, 2
    s_cselect_b32 s67, s67, s68        ; combo1
    s_add_u32 s68, s66, {4*6144 + 2048}  ; combo2: (1,2+w)
    """)
    a(f"""
    v_lshrrev_b32 v4, 1, v6            ; g>>1
    v_mul_u32_u24 v4, 96, v4
    v_mul_u32_u24 v5, 6, v7
    v_add_u32 v4, v4, v5               ; dbase
    v_and_b32 v5, 1, v6                ; g&1
    v_mul_u32_u24 v84, {4*KP_PITCH}, v5
    v_add_u32 v84, {KPB}, v84
    v_lshlrev_b32 v5, 3, v5
    v_add_u32 v5, {VPB}, v5
    v_add_u32 v86, s44, v4             ; d for (0,w)
    v_lshl_add_u32 v112, v86, 1, v84
    s_add_u32 s59, s44, 4
    v_add_u32 v86, s59, v4
    v_lshl_add_u32 v113, v86, 1, v84
    s_sub_u32 s59, s44, 2
    v_add_u32 v86, s59, v4             ; d for (1,w-2)
    v_lshrrev_b32 v87, 3, v86
    v_add_u32 v87, v87, v86
    v_lshl_add_u32 v114, v87, 4, v5
    s_add_u32 s59, s44, 2
    v_add_u32 v86, s59, v4             ; d for (1,2+w)
    v_lshrrev_b32 v87, 3, v86
    v_add_u32 v87, v87, v86
    v_lshl_add_u32 v115, v87, 4, v5
    s_mov_b32 s62, 0
    """)
    if opt.qlate:
        a("s_barrier")
        prio(0)
        qdma(nq, 12)
        prio(3)
    if opt.delay:
        a(f"s_sleep {opt.delay}")
    def payload():
        for cb in range(3):
            a(f"s_mov_b32 s60, s{66+cb}")
            for j in range(4):
                a(f"buffer_load_dwordx4 {v(PAY+16*cb+4*j,4)}, v85, s[36:39], s60 offen sc1")
                if j < 3: a("s_add_u32 s60, s60, 6144")
    payload()
    a(f"s_waitcnt vmcnt(0)")
    stamp(7)
    a.label("L_pchk")
    a(f"v_max_u32 v4, v{PAY}, v{PAY+1}")
    for k in range(2, 48, 2):
        a(f"v_max3_u32 v4, v{PAY+k}, v{PAY+k+1}, v4")
    a(f"""
    v_cmp_eq_u32 vcc, -1, v4
    s_add_u32 s62, s62, 1
    s_cmp_eq_u64 vcc, 0
    s_cbranch_scc1 L_pok
    s_cmp_gt_u32 s62, 100000
    s_cbranch_scc1 L_pok
    s_sleep {opt.retry_sleep}
    """)
    prio(3)
    payload()
    a("s_waitcnt vmcnt(0)")
    a("s_branch L_pchk")
    a.label("L_pok")
    prio(0)
    stamp(8)
    for cb in range(3):
        o = PAY + 16*cb
        for i in range(4):
            a(f"v_add_f32 v{o+i}, v{o+i}, v{o+4+i}")
            a(f"v_add_f32 v{o+8+i}, v{o+8+i}, v{o+12+i}")
        for i in range(4):
            a(f"v_add_f32 v{o+i}, v{o+i}, v{o+8+i}")
        a(f"v_cvt_pk_bf16_f32 v{o}, v{o}, v{o+1}")
        a(f"v_cvt_pk_bf16_f32 v{o+1}, v{o+2}, v{o+3}")
    def kpw(addr, o):
        a(f"""
        ds_write_b16 v{addr}, v{o} offset:0
        ds_write_b16_d16_hi v{addr}, v{o} offset:{KP_PITCH}
        ds_write_b16 v{addr}, v{o+1} offset:{2*KP_PITCH}
        ds_write_b16_d16_hi v{addr}, v{o+1} offset:{3*KP_PITCH}
        """)
    kpw(112, PAY)
    a(f"ds_write_b64 v115, {v(PAY+32,2)}")
    a("s_cmp_lt_u32 s44, 2")
    a("s_cbranch_scc1 L_c1k")
    a(f"ds_write_b64 v114, {v(PAY+16,2)}")
    a("s_branch L_pay_done")
    a.label("L_c1k")
    kpw(113, PAY+16)
    a("s_branch L_pay_done")
    a.label("L_w67")
    a.label("L_w45")
    prio(0)
    stamp(6)
    if opt.qlate:
        a("s_barrier")
        qdma(nq, 12)
    a.label("L_pay_done")
    A1 = 8
    B02 = 32
    B1 = 48
    QF = 128
    DD = 176
    a(f"""
    v_and_b32 v4, 7, v7
    v_mul_u32_u24 v4, {KP_PITCH}, v4
    v_lshl_add_u32 v4, v6, 4, v4
    v_add_u32 v64, {KPB}, v4           ; A1 addr
    v_lshrrev_b32 v4, 1, v6            ; g>>1
    v_and_b32 v5, 1, v6                ; g&1
    v_mul_u32_u24 v65, 144, v7         ; 144c
    v_mul_u32_u24 v66, 1152, v4
    v_add_u32 v66, v66, v65
    v_lshl_add_u32 v66, v5, 3, v66
    v_add_u32 v66, {VPB}, v66          ; B02 addr
    v_lshrrev_b32 v67, 3, v7           ; c>>3
    v_cmp_eq_u32 vcc, v67, v4
    v_mul_u32_u24 v67, {144*24}, v4
    v_sub_u32 v67, v65, v67            ; g>>1 ? 144c-144*24 : 144c
    v_add_u32 v67, {144*16 + VPB}, v67 ; g<2: 144(16+c) ; g>=2: 144(c-8)
    v_mov_b32 v68, {ZB}
    v_cndmask_b32 v67, v68, v67, vcc
    v_lshl_add_u32 v67, v5, 3, v67     ; B1 addr
    v_mul_u32_u24 v4, 768, v7
    v_add_u32 v4, s55, v4
    """)
    for aa in range(4):
        a(f"""
        v_add_u32 v5, {4*aa}, v6
        v_xor_b32 v5, v5, v7
        v_lshl_add_u32 v{68+aa}, v5, 4, v4
        """)
    a(f"""
    s_mov_b32 s60, {f2u(192**-0.5):#x}
    s_mov_b32 s61, {f2u(1.4426950408889634):#x}
    v_cmp_gt_u32 vcc, 32, v1           ; lanes g<2
    v_lshlrev_b32 v116, 4, v7
    v_mul_u32_u24 v117, 3072, v6
    v_add_u32 v116, v116, v117         ; O voffset
    """)
    a("s_waitcnt vmcnt(0)")
    for u in range(12):
        a(f"ds_read_b128 {v(QF+4*u,4)}, v{68+(u&3)} offset:{QB + (u>>2)*256}")
    a("s_waitcnt lgkmcnt(0)")
    a("s_barrier")
    stamp(9)
    for s6 in range(6):
        a(f"ds_read_b128 {v(A1+4*s6,4)}, v64 offset:{64*s6}")
    for t8 in range(8):
        a(f"ds_read_b64 {v(B02+2*t8,2)}, v66 offset:{16*t8}")
    stamp(13)
    a("s_waitcnt lgkmcnt(0)")
    for t8 in range(8):
        a(f"ds_read_b64 {v(B1+2*t8,2)}, v67 offset:{16*t8}")
    for s6 in range(6):
        cin0 = "0" if s6 == 0 else v(DD,4)
        cin1 = "0" if s6 == 0 else v(DD+4,4)
        a(f"v_mfma_f32_16x16x32_bf16 {v(DD,4)}, {v(A1+4*s6,4)}, {v(QF+4*s6,4)}, {cin0}")
        a(f"v_mfma_f32_16x16x32_bf16 {v(DD+4,4)}, {v(A1+4*s6,4)}, {v(QF+4*(6+s6),4)}, {cin1}")
    a("s_nop 7")
    S0 = 76
    for i in range(4):
        a(f"v_cndmask_b32 v{S0+i}, v{DD+4+i}, v{DD+i}, vcc")
    a(f"""
    v_cvt_pk_bf16_f32 v80, v{S0}, v{S0+1}
    v_cvt_pk_bf16_f32 v81, v{S0+2}, v{S0+3}
    v_lshlrev_b32 v{S0}, 16, v80
    v_and_b32 v{S0+1}, 0xffff0000, v80
    v_lshlrev_b32 v{S0+2}, 16, v81
    v_and_b32 v{S0+3}, 0xffff0000, v81
    v_mul_f32 v{S0}, s60, v{S0}
    v_mul_f32 v{S0+1}, s60, v{S0+1}
    v_mul_f32 v{S0+2}, s60, v{S0+2}
    v_mul_f32 v{S0+3}, s60, v{S0+3}
    v_cvt_pk_bf16_f32 v80, v{S0}, v{S0+1}
    v_cvt_pk_bf16_f32 v81, v{S0+2}, v{S0+3}
    v_lshlrev_b32 v{S0}, 16, v80
    v_and_b32 v{S0+1}, 0xffff0000, v80
    v_lshlrev_b32 v{S0+2}, 16, v81
    v_and_b32 v{S0+3}, 0xffff0000, v81
    v_max_f32 v80, v{S0}, v{S0+1}
    v_max3_f32 v80, v{S0+2}, v{S0+3}, v80
    v_mov_b32 v81, v80
    s_nop 1
    v_permlane16_swap_b32 v80, v81
    s_nop 1
    v_max_f32 v80, v80, v81
    v_sub_f32 v{S0}, v{S0}, v80
    v_sub_f32 v{S0+1}, v{S0+1}, v80
    v_sub_f32 v{S0+2}, v{S0+2}, v80
    v_sub_f32 v{S0+3}, v{S0+3}, v80
    v_mul_f32 v{S0}, s61, v{S0}
    v_mul_f32 v{S0+1}, s61, v{S0+1}
    v_mul_f32 v{S0+2}, s61, v{S0+2}
    v_mul_f32 v{S0+3}, s61, v{S0+3}
    v_exp_f32 v{S0}, v{S0}
    v_exp_f32 v{S0+1}, v{S0+1}
    v_exp_f32 v{S0+2}, v{S0+2}
    v_exp_f32 v{S0+3}, v{S0+3}
    s_nop 0
    v_add_f32 v80, v{S0}, v{S0+1}
    v_add_f32 v81, v{S0+2}, v{S0+3}
    v_add_f32 v80, v80, v81
    v_mov_b32 v81, v80
    s_nop 1
    v_permlane16_swap_b32 v80, v81
    s_nop 1
    v_add_f32 v80, v80, v81
    v_rcp_f32 v80, v80
    s_nop 0
    v_mul_f32 v{S0}, v{S0}, v80
    v_mul_f32 v{S0+1}, v{S0+1}, v80
    v_mul_f32 v{S0+2}, v{S0+2}, v80
    v_mul_f32 v{S0+3}, v{S0+3}, v80
    v_cvt_pk_bf16_f32 v82, v{S0}, v{S0+1}
    v_cvt_pk_bf16_f32 v83, v{S0+2}, v{S0+3}
    v_mov_b32 v80, 0
    v_cndmask_b32 v84, v80, v82, vcc   ; A2_E
    v_cndmask_b32 v85, v80, v83, vcc
    v_cndmask_b32 v86, v82, v80, vcc   ; A2_O
    v_cndmask_b32 v87, v83, v80, vcc
    s_waitcnt lgkmcnt(0)
    s_nop 1
    """)
    stamp(12)
    def seg_mfma(seg, base):
        A = {0: "v[84:85]", 1: "v[82:83]", 2: "v[86:87]"}[seg]
        for t8 in range(8):
            B = v((B1 if seg == 1 else B02) + 2*t8, 2)
            a(f"v_mfma_f32_16x16x16_bf16 {v(base+4*t8,4)}, {A}, {B}, 0")
    def seg_store(seg, base, out):
        for i in range(4):
            for q in range(4):
                a(f"v_cvt_pk_bf16_f32 v{out+4*i+q}, v{base+4*(2*q)+i}, v{base+4*(2*q+1)+i}")
            a(f"buffer_store_dwordx4 {v(out+4*i,4)}, v116, s[32:35], s55 offen offset:{768*i+256*seg} {opt.oflag}")
    seg_mfma(0, DD)
    seg_mfma(1, DD+32)
    seg_store(0, DD, 88)
    seg_mfma(2, DD)
    seg_store(1, DD+32, 128)
    a("s_nop 7")
    seg_store(2, DD, 144)
    stamp(10)
    if stamps:
        a("s_waitcnt vmcnt(0)")
        stamp(11)
        a(f"s_mov_b32 s{70+2*14}, s62")
        a(f"s_getreg_b32 s{71+2*14}, hwreg(HW_REG_XCC_ID)")
        a(f"""
        s_lshl_b32 s60, s2, 3
        s_add_u32 s60, s60, s44
        s_lshl_b32 s60, s60, 7
        s_add_u32 s60, s60, 0x8000000
        s_add_u32 s62, s18, s60
        s_addc_u32 s63, s19, 0
        s_mov_b64 exec, 1
        v_mov_b32 v4, 0
        """)
        for k in range(15):
            a(f"v_mov_b32 v6, s{70+2*k}")
            a(f"v_mov_b32 v7, s{71+2*k}")
            a(f"global_store_dwordx2 v4, v[6:7], s[62:63] offset:{8*k}")
            a("s_nop 1")
    a.label("L_end")
    a("s_endpgm")
    return a.text()

def parser():
    ap = argparse.ArgumentParser()
    ap.add_argument("-o", default="k.s")
    ap.add_argument("--stamps", action="store_true")
    ap.add_argument("--prio", type=int, default=1)
    ap.add_argument("--fast", type=int, default=1)
    ap.add_argument("--pretouch", type=int, default=0)
    ap.add_argument("--bearly", type=int, default=1)
    ap.add_argument("--clearwave", type=int, default=0)
    ap.add_argument("--hmap", type=int, default=0)
    ap.add_argument("--qlate", type=int, default=0)
    ap.add_argument("--delay", type=int, default=0)
    ap.add_argument("--retry_sleep", type=int, default=2)
    ap.add_argument("--kvflag", default="nt")
    ap.add_argument("--qflag", default="nt")
    ap.add_argument("--oflag", default="nt")
    return ap

if __name__ == "__main__":
    opt = parser().parse_args()
    open(opt.o, "w").write(wrap(gen(opt), LDS_BYTES))
    print("wrote", opt.o, "lds", LDS_BYTES)
```

```python
import struct, sys, argparse
from gen import Asm, v, s, f2u, NAME, HEADER

QB   = 0
PB   = 98304
KPB  = PB + 49152
KP_PITCH = 400
VPB  = KPB + 8 * KP_PITCH
ZB   = VPB + 24 * 144
LDS_BYTES = ZB + 512
SPIN = 100000

DOC = """; ---------------------------------------------------------------------------------------------
;
; ---------------------------------------------------------------------------------------------
"""

def gen(opt):
    a = Asm()
    c = a.c
    stamps = opt.stamps
    def stamp(k):
        if not stamps: return
        a(f"s_memrealtime s[{70+2*k}:{71+2*k}]")
        a("s_waitcnt lgkmcnt(0)")
    def prio(p): a(f"s_setprio {p}")
    EB = 8; ACC = 24; FB = 48; QV = 72; LB = 128
    RB = 176; PAY = 208
    A_KP0, A_KP1, A_VP1, A_VP2, A_A1, A_B02, A_B1, A_QF, A_O, A_PW, A_PR, A_FL, C_NAN, FLG = 88, 89, 90, 91, 92, 93, 94, 95, 99, 100, 101, 102, 103, 104
    A1 = 8; B02 = 32; B1 = 48; QF = 128; DD = 176
    order = [0,6,1,7,2,8,3,9,4,10,5,11]
    def qfrag():
        for u in order:
            a(f"ds_read_b128 {v(QF+4*u,4)}, v{A_QF+(u&3)} offset:{QB + (u>>2)*256}")
    def qdma(i0=0, i1=12):
        for i in range(i0, i1):
            if i % 4 == 0 or i == i0:
                a(f"s_add_u32 s56, s55, {(i // 4) * 4096}")
                a(f"s_mov_b32 m0, s56")
                a("s_nop 0")
            a(f"buffer_load_dwordx4 v{QV+i}, s[28:31], s56 offen offset:{(i%4)*1024} nt lds")
    c("workgroups past the 256 that carry work leave at once")
    a("s_cmp_ge_u32 s2, 256")
    a("s_cbranch_scc1 L_end")
    a("s_load_dwordx16 s[4:19], s[0:1], 0")
    if stamps: a("s_memrealtime s[70:71]")
    prio(2)
    a(f"""
    v_lshrrev_b32 v2, 6, v0
    v_and_b32 v1, 63, v0               ; v1 = lane
    v_nop
    v_readfirstlane_b32 s44, v2        ; s44 = wave
    s_and_b32 s40, s2, 7               ; the 8 workgroups of a head have equal id % 8
    s_lshr_b32 s41, s2, 3
    s_and_b32 s41, s41, 3
    s_lshl_b32 s40, s40, 2
    s_add_u32 s40, s40, s41            ; s40 = head
    s_lshr_b32 s41, s2, 5              ; s41 = slot
    s_lshr_b32 s42, s41, 2
    s_and_b32 s43, s41, 3
    s_lshl_b32 s45, s40, 3
    s_add_u32 s45, s45, s41
    s_lshl_b32 s51, s40, 2
    s_add_u32 s51, s51, s43
    s_mul_i32 s51, s51, 196608
    s_mul_i32 s53, s44, 24576
    s_add_u32 s46, s53, 0
    s_add_u32 s47, s53, 6144
    s_add_u32 s48, s53, 12288
    s_add_u32 s49, s53, 18432
    s_lshl_b32 s50, s43, 10
    s_lshl_b32 s54, s44, 7
    s_add_u32 s50, s50, s54
    s_mul_i32 s64, s45, 6144
    v_lshrrev_b32 v4, 5, v1
    v_and_b32 v5, 31, v1
    v_mul_u32_u24 v4, 3072, v4
    v_mul_u32_u24 v5, 12, v5
    v_add_u32 v2, v4, v5
    v_lshrrev_b32 v6, 4, v1
    v_and_b32 v7, 15, v1
    v_and_b32 v4, 7, v1
    v_lshlrev_b32 v4, 12, v4
    v_lshrrev_b32 v5, 5, v1
    v_lshl_add_u32 v3, v5, 4, v4
    v_lshrrev_b32 v4, 3, v1
    v_xor_b32 v4, v4, v6
    v_and_b32 v4, 1, v4
    v_lshlrev_b32 v4, 30, v4
    v_or_b32 v3, v3, v4
    v_lshlrev_b32 v85, 4, v1           ; v85 = lane*16
    v_mov_b32 v88, -1
    v_mov_b32 v89, -1
    v_mov_b32 v90, -1
    v_mov_b32 v91, -1
    """)
    a("s_waitcnt lgkmcnt(0)")
    a(f"""
    s_cmp_eq_u32 s42, 0
    s_cselect_b32 s20, s6, s8
    s_cselect_b32 s21, s7, s9
    s_cselect_b32 s24, s10, s12
    s_cselect_b32 s25, s11, s13
    s_add_u32 s20, s20, s51
    s_addc_u32 s21, s21, 0
    s_mov_b32 s22, 196608
    s_mov_b32 s23, 0x20000
    s_mov_b32 s26, 32768
    s_mov_b32 s27, 0x20000
    s_mov_b32 s36, s18
    s_mov_b32 s37, s19
    s_mov_b32 s38, {256*6144}
    s_mov_b32 s39, 0x20000
    """)
    c("wave 0 poisons the workgroup's hand-off slot")
    a("s_cmp_lg_u32 s44, 0")
    a("s_cbranch_scc1 L_noclear")
    a("s_add_u32 s65, s64, 4096")
    for t in range(6):
        so = "s64" if t < 4 else "s65"
        a(f"buffer_store_dwordx4 v[88:91], v85, s[36:39], {so} offen offset:{(t%4)*1024} sc1")
    a.label("L_noclear")
    c("projection fragments, then all of this wave's K/V rows")
    for b in range(4):
        a(f"buffer_load_dwordx4 {v(EB+4*b,4)}, v3, s[24:27], s50 offen offset:{32*b}")
    for b in range(4):
        for jj in range(8):
            a(f"buffer_load_dwordx3 {v(LB+32*b+4*jj,3)}, v2, s[20:23], s{46+b} offen offset:{384*jj} nt")
    prio(0)
    stamp(1)
    c("everything below up to phase 1 overlaps the loads in flight")
    a(f"""
    s_mul_i32 s52, s45, 98304
    s_mul_i32 s55, s44, 12288
    s_add_u32 s28, s4, s52
    s_addc_u32 s29, s5, 0
    s_mov_b32 s30, 98304
    s_mov_b32 s31, 0x20000
    s_add_u32 s32, s14, s52
    s_addc_u32 s33, s15, 0
    s_mov_b32 s34, 98304
    s_mov_b32 s35, 0x20000
    s_and_b32 s60, s45, 0xfc
    s_add_u32 s6, s16, s60
    s_addc_u32 s7, s17, 0
    s_and_b32 s8, s41, 3
    s_lshl_b32 s8, s8, 3
    s_lshl_b32 s9, 1, s8
    """)
    c("Q goes to LDS by DMA; the 16-byte chunks of a 256-byte block are xor-ed with the row-pair index (block/3)")
    a("v_lshlrev_b32 v4, 8, v6")
    for i in range(12):
        a(f"""
        v_add_u32 v5, {4*i}, v6
        v_mul_u32_u24 v5, 0x5556, v5
        v_lshrrev_b32 v5, 16, v5
        v_xor_b32 v5, v5, v7
        v_lshl_add_u32 v{QV+i}, v5, 4, v4
        """)
    a(f"""
    s_mov_b32 s57, 0x05040100
    s_mov_b32 s58, 0x07060302
    s_mul_i32 s59, s44, 6144
    s_add_u32 s59, s59, {PB}
    v_add_u32 v{A_PW}, s59, v85
    s_lshl_b32 s59, s44, 10
    s_add_u32 s60, s59, {PB}
    v_add_u32 v{A_PR}, s60, v85
    s_lshl_b32 s61, s40, 3
    v_mov_b32 v{A_FL}, s61
    v_mov_b32 v{C_NAN}, 0x7fc00000
    v_lshrrev_b32 v4, 1, v6
    v_mul_u32_u24 v4, 96, v4
    v_mul_u32_u24 v5, 6, v7
    v_add_u32 v4, v4, v5
    v_and_b32 v5, 1, v6
    v_mul_u32_u24 v84, {4*KP_PITCH}, v5
    v_add_u32 v84, {KPB}, v84
    v_lshlrev_b32 v5, 3, v5
    v_add_u32 v5, {VPB}, v5
    v_add_u32 v86, s44, v4
    v_lshl_add_u32 v{A_KP0}, v86, 1, v84
    s_add_u32 s59, s44, 4
    v_add_u32 v86, s59, v4
    v_lshl_add_u32 v{A_KP1}, v86, 1, v84
    s_sub_u32 s59, s44, 2
    v_add_u32 v86, s59, v4
    v_lshrrev_b32 v87, 3, v86
    v_add_u32 v87, v87, v86
    v_lshl_add_u32 v{A_VP1}, v87, 4, v5
    s_add_u32 s59, s44, 2
    v_add_u32 v86, s59, v4
    v_lshrrev_b32 v87, 3, v86
    v_add_u32 v87, v87, v86
    v_lshl_add_u32 v{A_VP2}, v87, 4, v5
    v_and_b32 v4, 7, v7
    v_mul_u32_u24 v4, {KP_PITCH}, v4
    v_lshl_add_u32 v4, v6, 4, v4
    v_add_u32 v{A_A1}, {KPB}, v4
    v_lshrrev_b32 v4, 1, v6
    v_and_b32 v5, 1, v6
    v_mul_u32_u24 v86, 144, v7
    v_mul_u32_u24 v87, 1152, v4
    v_add_u32 v87, v87, v86
    v_lshl_add_u32 v87, v5, 3, v87
    v_add_u32 v{A_B02}, {VPB}, v87
    v_lshrrev_b32 v87, 3, v7
    v_cmp_eq_u32 vcc, v87, v4
    v_mul_u32_u24 v87, {144*24}, v4
    v_sub_u32 v87, v86, v87
    v_add_u32 v87, {144*16 + VPB}, v87
    v_mov_b32 v86, {ZB}
    v_cndmask_b32 v87, v86, v87, vcc
    v_lshl_add_u32 v{A_B1}, v5, 3, v87
    v_mul_u32_u24 v4, 768, v7
    v_add_u32 v4, s55, v4
    """)
    for aa in range(4):
        a(f"""
        v_add_u32 v5, {4*aa}, v6
        v_xor_b32 v5, v5, v7
        v_lshl_add_u32 v{A_QF+aa}, v5, 4, v4
        """)
    a(f"""
    v_lshlrev_b32 v4, 4, v7
    v_mul_u32_u24 v5, 3072, v6
    v_add_u32 v{A_O}, v4, v5
    s_mul_i32 s65, s40, {8*6144}
    s_lshl_b32 s59, s44, 10
    s_add_u32 s10, s65, s59            ; (K, slice w)
    s_add_u32 s11, s10, 4096           ; (K, slice 4+w)
    s_add_u32 s12, s10, {4*6144 - 2048}  ; (V, slice w-2)
    s_cmp_lt_u32 s44, 2
    s_cselect_b32 s11, s11, s12
    s_add_u32 s12, s10, {4*6144 + 2048}  ; (V, slice 2+w)
    s_add_u32 s13, s64, s59
    s_cmp_lg_u32 s44, 7
    s_cbranch_scc1 L_nozero
    v_mov_b32 v4, 0
    v_mov_b32 v5, 0
    v_lshlrev_b32 v84, 3, v1
    v_add_u32 v84, {ZB}, v84
    ds_write_b64 v84, v[4:5]
    """)
    a.label("L_nozero")
    CB = (10, 11, 12)
    c("phase 1: projection[8 x 64] * rows[64 x 192]; byte permutes pair up rows along the MFMA k index")
    for b in range(4):
        a(f"s_waitcnt vmcnt({24 - 8*b})")
        if b == 0: stamp(2)
        for t in range(6):
            u, p = t // 2, t % 2
            sel = "s58" if p else "s57"
            for m in range(4):
                lo = LB + 32*b + 4*(2*m) + u
                hi = LB + 32*b + 4*(2*m+1) + u
                a(f"v_perm_b32 v{FB+4*t+m}, v{hi}, v{lo}, {sel}")
            if t >= 1:
                cin = "0" if b == 0 else v(ACC+4*(t-1),4)
                a(f"v_mfma_f32_16x16x32_bf16 {v(ACC+4*(t-1),4)}, {v(EB+4*b,4)}, {v(FB+4*(t-1),4)}, {cin}")
        a("s_nop 1")
        cin = "0" if b == 0 else v(ACC+20,4)
        a(f"v_mfma_f32_16x16x32_bf16 {v(ACC+20,4)}, {v(EB+4*b,4)}, {v(FB+20,4)}, {cin}")
    c("wave 0: its poison stores have completed (vmcnt(0) above): raise this workgroup's flag")
    a("s_cmp_lg_u32 s44, 0")
    a("s_cbranch_scc1 L_noflag")
    a("s_atomic_or s9, s[6:7], 0")
    a.label("L_noflag")
    a("s_nop 5")
    for t in range(6):
        a(f"ds_write_b128 v{A_PW}, {v(ACC+4*t,4)} offset:{1024*t}")
    stamp(3)
    c("waves 0..3: their Q tiles (low priority: issued behind every K/V load of the CU)")
    a("s_cmp_ge_u32 s44, 4")
    a("s_cbranch_scc1 L_noq0")
    qdma()
    a.label("L_noq0")
    stamp(4)
    a("s_waitcnt lgkmcnt(0)")
    a("s_barrier")
    stamp(5)
    c("waves 0..5: sum the eight partials of one slice and publish it")
    a("s_cmp_ge_u32 s44, 6")
    a("s_cbranch_scc1 L_pubdone")
    prio(3)
    a("s_cmp_ge_u32 s44, 4")
    a("s_cbranch_scc1 L_nofl")
    a(f"global_load_dwordx2 v[{FLG}:{FLG+1}], v{A_FL}, s[16:17] sc1")
    a.label("L_nofl")
    for w2 in range(8):
        a(f"ds_read_b128 {v(RB+4*w2,4)}, v{A_PR} offset:{6144*w2}")
    a("s_waitcnt lgkmcnt(0)")
    R = RB
    for st in (1, 2, 4):
        for w2 in range(0, 8, 2*st):
            for i in range(4):
                a(f"v_add_f32 v{R+4*w2+i}, v{R+4*w2+i}, v{R+4*(w2+st)+i}")
    for i in range(4):
        a(f"v_cmp_eq_u32 s[{66+2*(i%2)}:{67+2*(i%2)}], -1, v{R+i}")
        if i % 2 == 1:
            a("s_nop 0")
            a(f"v_cndmask_b32 v{R+i-1}, v{R+i-1}, v{C_NAN}, s[66:67]")
            a(f"v_cndmask_b32 v{R+i}, v{R+i}, v{C_NAN}, s[68:69]")
    a(f"buffer_store_dwordx4 {v(RB,4)}, v85, s[36:39], s13 offen sc1")
    a.label("L_pubdone")
    stamp(6)
    a("s_barrier")
    a("s_cmp_ge_u32 s44, 4")
    a("s_cbranch_scc1 L_grpH")
    c("waves 0..3: own partial and Q tile have landed; the eight slots of the head must have been poisoned this launch")
    a("s_mov_b32 s62, 0")
    a("s_waitcnt vmcnt(0)")
    a.label("L_chk")
    a(f"""
    v_and_b32 v4, v{FLG}, v{FLG+1}
    s_add_u32 s62, s62, 1
    v_readfirstlane_b32 s63, v4
    s_cmp_eq_u32 s63, 0x01010101
    s_cbranch_scc1 L_chk_ok
    s_cmp_gt_u32 s62, {SPIN}
    s_cbranch_scc1 L_chk_ok
    s_sleep 2
    global_load_dwordx2 v[{FLG}:{FLG+1}], v{A_FL}, s[16:17] sc1
    s_waitcnt vmcnt(0)
    s_branch L_chk
    """)
    a.label("L_chk_ok")
    qfrag()
    def payload():
        for cb in range(3):
            a(f"s_mov_b32 s60, s{CB[cb]}")
            for j in range(4):
                a(f"buffer_load_dwordx4 {v(PAY+16*cb+4*j,4)}, v85, s[36:39], s60 offen sc1")
                if j < 3: a("s_add_u32 s60, s60, 6144")
    payload()
    a("s_barrier")
    a("s_mov_b32 s62, 0")
    a("s_waitcnt vmcnt(0)")
    stamp(7)
    a.label("L_pchk")
    a(f"v_max_u32 v4, v{PAY}, v{PAY+1}")
    for k in range(2, 48, 2):
        a(f"v_max3_u32 v4, v{PAY+k}, v{PAY+k+1}, v4")
    a(f"""
    v_cmp_eq_u32 vcc, -1, v4
    s_add_u32 s62, s62, 1
    s_cmp_eq_u64 vcc, 0
    s_cbranch_scc1 L_pok
    s_cmp_gt_u32 s62, {SPIN}
    s_cbranch_scc1 L_pok
    s_sleep 2
    """)
    payload()
    a("s_waitcnt vmcnt(0)")
    a("s_branch L_pchk")
    a.label("L_pok")
    prio(0)
    stamp(8)
    c("sum the four row quarters, round to bf16 like the reference, lay kp / vp out in LDS")
    for cb in range(3):
        o = PAY + 16*cb
        for i in range(4):
            a(f"v_add_f32 v{o+i}, v{o+i}, v{o+4+i}")
            a(f"v_add_f32 v{o+8+i}, v{o+8+i}, v{o+12+i}")
        for i in range(4):
            a(f"v_add_f32 v{o+i}, v{o+i}, v{o+8+i}")
        a(f"v_cvt_pk_bf16_f32 v{o}, v{o}, v{o+1}")
        a(f"v_cvt_pk_bf16_f32 v{o+1}, v{o+2}, v{o+3}")
    def kpw(addr, o):
        a(f"""
        ds_write_b16 v{addr}, v{o} offset:0
        ds_write_b16_d16_hi v{addr}, v{o} offset:{KP_PITCH}
        ds_write_b16 v{addr}, v{o+1} offset:{2*KP_PITCH}
        ds_write_b16_d16_hi v{addr}, v{o+1} offset:{3*KP_PITCH}
        """)
    kpw(A_KP0, PAY)
    a(f"ds_write_b64 v{A_VP2}, {v(PAY+32,2)}")
    a("s_cmp_lt_u32 s44, 2")
    a("s_cbranch_scc1 L_c1k")
    a(f"ds_write_b64 v{A_VP1}, {v(PAY+16,2)}")
    a("s_branch L_pay_done")
    a.label("L_c1k")
    kpw(A_KP1, PAY+16)
    a("s_branch L_pay_done")
    a.label("L_grpH")
    c("waves 6,7 load their Q tiles behind the published partials, waves 4,5 behind the gather")
    prio(0)
    a("s_cmp_ge_u32 s44, 6")
    a("s_cbranch_scc1 L_hfirst")
    a("s_barrier")
    qdma()
    a("s_branch L_pay_done")
    a.label("L_hfirst")
    qdma()
    a("s_barrier")
    a("s_waitcnt vmcnt(0)")
    qfrag()
    a.label("L_pay_done")
    a(f"""
    s_mov_b32 s60, {f2u(192**-0.5):#x}
    s_mov_b32 s61, {f2u(1.4426950408889634):#x}
    v_cmp_gt_u32 vcc, 32, v1
    """)
    a("s_waitcnt lgkmcnt(0)")
    a("s_barrier")
    stamp(9)
    c("phase 2: this wave's 32 query rows as 16 row pairs")
    for s6 in range(6):
        a(f"ds_read_b128 {v(A1+4*s6,4)}, v{A_A1} offset:{64*s6}")
    for t8 in range(8):
        a(f"ds_read_b64 {v(B02+2*t8,2)}, v{A_B02} offset:{16*t8}")
    a("s_and_b32 s59, s44, 6")
    a("s_cmp_lg_u32 s59, 4")
    a("s_cbranch_scc1 L_qrd")
    a("s_waitcnt vmcnt(0)")
    a("s_waitcnt lgkmcnt(3)")
    qfrag()
    def score(s6):
        cin0 = "0" if s6 == 0 else v(DD,4)
        cin1 = "0" if s6 == 0 else v(DD+4,4)
        a(f"v_mfma_f32_16x16x32_bf16 {v(DD,4)}, {v(A1+4*s6,4)}, {v(QF+4*s6,4)}, {cin0}")
        a(f"v_mfma_f32_16x16x32_bf16 {v(DD+4,4)}, {v(A1+4*s6,4)}, {v(QF+4*(6+s6),4)}, {cin1}")
    for s6 in range(6):
        a(f"s_waitcnt lgkmcnt({10 - 2*s6})")
        score(s6)
    a("s_branch L_sdone")
    a.label("L_qrd")
    a("s_waitcnt lgkmcnt(8)")
    for s6 in range(6): score(s6)
    a.label("L_sdone")
    stamp(13)
    for t8 in range(8):
        a(f"ds_read_b64 {v(B1+2*t8,2)}, v{A_B1} offset:{16*t8}")
    S0 = 76
    c("lane (g, c): 4 of the 8 scores of row 2c + (g>>1); the other 4 are 16 lanes away")
    for i in range(4):
        a(f"v_cndmask_b32 v{S0+i}, v{DD+4+i}, v{DD+i}, vcc")
    a(f"""
    v_cvt_pk_bf16_f32 v80, v{S0}, v{S0+1}
    v_cvt_pk_bf16_f32 v81, v{S0+2}, v{S0+3}
    v_lshlrev_b32 v{S0}, 16, v80
    v_and_b32 v{S0+1}, 0xffff0000, v80
    v_lshlrev_b32 v{S0+2}, 16, v81
    v_and_b32 v{S0+3}, 0xffff0000, v81
    v_mul_f32 v{S0}, s60, v{S0}
    v_mul_f32 v{S0+1}, s60, v{S0+1}
    v_mul_f32 v{S0+2}, s60, v{S0+2}
    v_mul_f32 v{S0+3}, s60, v{S0+3}
    v_cvt_pk_bf16_f32 v80, v{S0}, v{S0+1}
    v_cvt_pk_bf16_f32 v81, v{S0+2}, v{S0+3}
    v_lshlrev_b32 v{S0}, 16, v80
    v_and_b32 v{S0+1}, 0xffff0000, v80
    v_lshlrev_b32 v{S0+2}, 16, v81
    v_and_b32 v{S0+3}, 0xffff0000, v81
    v_max_f32 v80, v{S0}, v{S0+1}
    v_max3_f32 v80, v{S0+2}, v{S0+3}, v80
    v_mov_b32 v81, v80
    s_nop 1
    v_permlane16_swap_b32 v80, v81
    s_nop 1
    v_max_f32 v80, v80, v81
    v_sub_f32 v{S0}, v{S0}, v80
    v_sub_f32 v{S0+1}, v{S0+1}, v80
    v_sub_f32 v{S0+2}, v{S0+2}, v80
    v_sub_f32 v{S0+3}, v{S0+3}, v80
    v_mul_f32 v{S0}, s61, v{S0}
    v_mul_f32 v{S0+1}, s61, v{S0+1}
    v_mul_f32 v{S0+2}, s61, v{S0+2}
    v_mul_f32 v{S0+3}, s61, v{S0+3}
    v_exp_f32 v{S0}, v{S0}
    v_exp_f32 v{S0+1}, v{S0+1}
    v_exp_f32 v{S0+2}, v{S0+2}
    v_exp_f32 v{S0+3}, v{S0+3}
    s_nop 0
    v_add_f32 v80, v{S0}, v{S0+1}
    v_add_f32 v81, v{S0+2}, v{S0+3}
    v_add_f32 v80, v80, v81
    v_mov_b32 v81, v80
    s_nop 1
    v_permlane16_swap_b32 v80, v81
    s_nop 1
    v_add_f32 v80, v80, v81
    v_rcp_f32 v80, v80
    s_nop 0
    v_mul_f32 v{S0}, v{S0}, v80
    v_mul_f32 v{S0+1}, v{S0+1}, v80
    v_mul_f32 v{S0+2}, v{S0+2}, v80
    v_mul_f32 v{S0+3}, v{S0+3}, v80
    v_cvt_pk_bf16_f32 v82, v{S0}, v{S0+1}
    v_cvt_pk_bf16_f32 v83, v{S0+2}, v{S0+3}
    v_mov_b32 v80, 0
    v_cndmask_b32 v84, v80, v82, vcc
    v_cndmask_b32 v85, v80, v83, vcc
    v_cndmask_b32 v86, v82, v80, vcc
    v_cndmask_b32 v87, v83, v80, vcc
    s_waitcnt lgkmcnt(0)
    s_nop 0
    """)
    stamp(12)
    c("output: a row pair is 3 segments of 256 bytes; lane (g, c) ends up with 16 contiguous bytes of row pair 4g+i")
    def seg_mfma(seg, base):
        A = {0: "v[84:85]", 1: "v[82:83]", 2: "v[86:87]"}[seg]
        for t8 in range(8):
            B = v((B1 if seg == 1 else B02) + 2*t8, 2)
            a(f"v_mfma_f32_16x16x16_bf16 {v(base+4*t8,4)}, {A}, {B}, 0")
    def seg_store(seg, base, out):
        for i in range(4):
            for q in range(4):
                a(f"v_cvt_pk_bf16_f32 v{out+4*i+q}, v{base+4*(2*q)+i}, v{base+4*(2*q+1)+i}")
            a(f"buffer_store_dwordx4 {v(out+4*i,4)}, v{A_O}, s[32:35], s55 offen offset:{768*i+256*seg} {opt.oflag}")
    seg_mfma(0, DD)
    seg_mfma(1, DD+32)
    seg_store(0, DD, 104)
    seg_mfma(2, DD)
    seg_store(1, DD+32, 128)
    a("s_nop 7")
    seg_store(2, DD, 144)
    stamp(10)
    if stamps:
        a("s_waitcnt vmcnt(0)")
        stamp(11)
        a(f"s_mov_b32 s{70+2*14}, s62")
        a(f"s_getreg_b32 s{71+2*14}, hwreg(HW_REG_XCC_ID)")
        a(f"""
        s_lshl_b32 s60, s2, 3
        s_add_u32 s60, s60, s44
        s_lshl_b32 s60, s60, 7
        s_add_u32 s60, s60, 0x8000000
        s_add_u32 s62, s18, s60
        s_addc_u32 s63, s19, 0
        s_mov_b64 exec, 1
        v_mov_b32 v4, 0
        """)
        for k in range(15):
            a(f"v_mov_b32 v6, s{70+2*k}")
            a(f"v_mov_b32 v7, s{71+2*k}")
            a(f"global_store_dwordx2 v4, v[6:7], s[62:63] offset:{8*k}")
            a("s_nop 1")
    a.label("L_end")
    a("s_endpgm")
    txt = a.text()
    return "\n".join(l.rstrip() for l in txt.split("\n") if l.strip()) + "\n"

def wrap(body, lds, nsgpr):
    out = HEADER
    out += "; Override launch geometry by editing the next line (default: block=256,\n"
    out += "; grid=ceil(out_elems/256), lds=0). Harness parses it; keep it on one line.\n"
    out += f"; @launch grid=(256,1,1) block=(512,1,1) lds={lds}\n"
    out += DOC
    out += f""".amdgcn_target "amdgcn-amd-amdhsa--gfx950"
.text
.globl {NAME}_kernel
.p2align 8
.type {NAME}_kernel,@function
{NAME}_kernel:
"""
    out += body
    out += f""".section .rodata,"a"
.p2align 6
.amdhsa_kernel {NAME}_kernel
  .amdhsa_next_free_vgpr 256
  .amdhsa_next_free_sgpr {nsgpr}
  .amdhsa_accum_offset 256
  .amdhsa_group_segment_fixed_size 0
  .amdhsa_kernarg_size 64
  .amdhsa_user_sgpr_count 2
  .amdhsa_user_sgpr_kernarg_segment_ptr 1
  .amdhsa_system_sgpr_workgroup_id_x 1
.end_amdhsa_kernel
"""
    return out

if __name__ == "__main__":
    ap = argparse.ArgumentParser()
    ap.add_argument("-o", default="k.s")
    ap.add_argument("--stamps", action="store_true")
    ap.add_argument("--oflag", default="sc1")
    opt = ap.parse_args()
    open(opt.o, "w").write(wrap(gen(opt), LDS_BYTES, 102 if opt.stamps else 72))
    print("wrote", opt.o, "lds", LDS_BYTES)
```
